```python
import torch

def _softmax(x, axis=-1):
    return torch.softmax(x, dim=axis)
def _gelu(x):
    return torch.nn.functional.gelu(x, approximate="tanh")
def _silu(x):
    return torch.nn.functional.silu(x)
def _sigmoid(x):
    return torch.sigmoid(x)
def _layernorm(x, axis=-1, eps=1e-5):
    m = x.mean(dim=axis, keepdim=True)
    v = x.var(dim=axis, keepdim=True, unbiased=False)
    return (x - m) / torch.sqrt(v + eps)
def _scatter_add(tgt, idx, src, axis=0):
    return tgt.clone().index_add_(axis, idx, src)
def _segment_sum(src, seg, n):
    out = torch.zeros((n,) + src.shape[1:], dtype=src.dtype)
    return out.index_add_(0, seg, src)
def _pad(x, pw):
    flat = tuple(v for pair in reversed(pw) for v in pair)
    return torch.nn.functional.pad(x, flat)

kernel_name = 'standalone__sliding_block_cached__decode'

def setup_inputs():

    _w = (lambda a: (lambda t: t.to(torch.bfloat16) if t.is_floating_point() else t)(torch.as_tensor(a)))
    B, Sq, D = 2, 1, 640
    Hq, Hkv, Sk, Dh = 32, 32, 16384, 192
    assert Hq % Hkv == 0, (Hq, Hkv)
    return {
        "x": _w((lambda *s: torch.randn(*s, dtype=torch.bfloat16) * 1.6)(B, Sq, D)),
        "k_cache": _w((lambda *s: torch.randn(*s, dtype=torch.bfloat16) * 1.6)(B, Hkv, Sk, Dh)),
        "v_cache": _w((lambda *s: torch.randn(*s, dtype=torch.bfloat16) * 0.05)(B, Hkv, Sk, Dh)),
        "wq": _w((lambda *s: torch.randn(*s, dtype=torch.bfloat16) * 1.6)(D, Hq * Dh) * (D ** -0.5)),
        "wo": _w((lambda *s: torch.randn(*s, dtype=torch.bfloat16) * 0.05)(Hq * Dh, D) * ((Hq * Dh) ** -0.5)),
    }

def reference(x, k_cache, v_cache, wq, wo):
    B, Sq, D = x.shape
    Hq, Dh = 32, 192
    Hkv, Sk = k_cache.shape[1], k_cache.shape[2]
    W = min(4096, max(256, Sk // 4))
    rep = Hq // Hkv
    q = (lambda x, *d: x.permute(*d))((x @ wq).reshape(B, Sq, Hq, Dh), 0, 2, 1, 3)
    k = (lambda x, n, axis: torch.repeat_interleave(x, n, dim=axis))(k_cache[:, :, Sk - W:, :], rep, axis=1)
    v = (lambda x, n, axis: torch.repeat_interleave(x, n, dim=axis))(v_cache[:, :, Sk - W:, :], rep, axis=1)
    scores = torch.einsum("bhqd,bhkd->bhqk", q, k) * (Dh ** -0.5)
    p = _softmax(scores, axis=-1)
    o = torch.einsum("bhqk,bhkd->bhqd", p, v)
    return (lambda x, *d: x.permute(*d))(o, 0, 2, 1, 3).reshape(B, Sq, Hq * Dh) @ wo
```

```python
import sys, argparse, struct

KNAME = "standalone__sliding_block_cached__decode_kernel"

def f32bits(x):
    return struct.unpack("<I", struct.pack("<f", x))[0]

class A:
    def __init__(self):
        self.lines = []
        self.vm = []
    def e(self, s):
        self.lines.append("    " + s)
    def c(self, s):
        self.lines.append("    ; " + s)
    def label(self, n):
        self.lines.append(n + ":")
    def vmem(self, s, tag=None):
        self.e(s)
        self.vm.append(tag)
        assert len(self.vm) <= 63, ("too many outstanding", len(self.vm))
    def throttle(self, D, add=1):
        if D and len(self.vm) + add > D:
            n = D - add
            self.e(f"s_waitcnt vmcnt({n})")
            self.vm = self.vm[len(self.vm) - n:] if n > 0 else []
    def wait_vm(self, tag):
        if tag not in self.vm:
            return
        idx = max(i for i, t in enumerate(self.vm) if t == tag)
        n = len(self.vm) - 1 - idx
        self.e(f"s_waitcnt vmcnt({n})")
        self.vm = self.vm[idx + 1:]
    def nop(self, n):
        while n > 0:
            k = min(n, 16)
            self.e(f"s_nop {k-1}")
            n -= k

def vr(a, n=1):
    return f"v{a}" if n == 1 else f"v[{a}:{a+n-1}]"
def sr(a, n=1):
    return f"s{a}" if n == 1 else f"s[{a}:{a+n-1}]"

V_TID, V_LANE, V_OFFKV, V_OFFW = 0, 1, 2, 3
V_X = 4
V_TAG8 = 3
V_FF = 4
V_LDSP = 5
V_L = 6
V_MC = 7
V_OFFD = 8
V_T0, V_T1, V_T2 = 9, 10, 11
V_Q = 12
V_S = 24
V_ACC = 40
V_RING = 64

S_X, S_K, S_V, S_WQ, S_WO, S_OUT, S_DBG, S_WS = 4, 6, 8, 10, 12, 14, 16, 18
R_K, R_V, R_WQ, R_X, R_WO, R_WS, R_OUT = 20, 24, 28, 32, 36, 40, 44
S_EPOCH = 3
S_TAG = 48
S_RQ, S_CH = 49, 50
S_CNT = 51
S_GOFF = 52
S_WOFF = 68
S_H, S_I, S_B, S_W = 78, 79, 80, 81
S_T = 82
S_REC = 94
S_SPIN = 95
TS_PAIRS = [96, 98, 100, 90, 92]

L_WO = 0
L_PART = 32768
L_QBF = 40960
L_OBF = 41472
L_M = 41984
L_FLAG = 42048
L_SFLAG = 42064
L_SIZE = 43008

WS_EPOCH = 0
WS_H1 = 0x100000
WS_H2 = 0x200000
WS_QX = 0x300000
WS_TS = 0x400000
WS_CNT = 0x600000
CNT_STRIDE = 16640
NSA = 16
NSB = 8
def setcfg(nsa, nsb):
    global NSA, NSB, STAT_ROWS, POOL_ROW0, NTASK
    NSA, NSB = nsa, nsb
    STAT_ROWS = 3*8*NSA + 5*8*NSB
    POOL_ROW0 = 4*STAT_ROWS
    NTASK = (4096 - POOL_ROW0)//16
    assert (4096 - POOL_ROW0) % 16 == 0
setcfg(16, 8)
WS_SIZE = 1610612736

AD_FIN, AD_L16, AD_H1, AD_OBW, AD_B, AD_ST, AD_TR, AD_ZERO, AD_FW = [V_Q + k for k in range(9)]
SX_REC, SX_H1, SX_ST, SX_H2, SX_OUT, SX_NEED, SX_M = 52, 53, 54, 57, 58, 60, 62
L_FIN = L_PART
LOG2E = f32bits(1.4426950408889634)
SCALE = f32bits(192 ** -0.5)
SPINMAX = 1 << 17

def slot(g):
    return V_RING + 12 * g

def reduce24(a, acc):
    a.nop(3)
    for j in range(3):
        for e in range(4):
            a.e(f"v_permlane32_swap_b32 v{acc+8*j+e}, v{acc+8*j+e+4}")
    for j in range(3):
        for e in range(4):
            a.e(f"v_add_f32 v{acc+8*j+e}, v{acc+8*j+e}, v{acc+8*j+e+4}")
    a.nop(2)
    for j in range(3):
        for e in range(2):
            a.e(f"v_permlane16_swap_b32 v{acc+8*j+e}, v{acc+8*j+e+2}")
    for j in range(3):
        for e in range(2):
            a.e(f"v_add_f32 v{acc+8*j+e}, v{acc+8*j+e}, v{acc+8*j+e+2}")
    a.nop(2)
    for j in range(3):
        a.e(f"v_add_f32_dpp v{acc+8*j}, v{acc+8*j}, v{acc+8*j} row_ror:8 row_mask:0xf bank_mask:0x3")
    for j in range(3):
        a.e(f"v_add_f32_dpp v{acc+8*j}, v{acc+8*j+1}, v{acc+8*j+1} row_ror:8 row_mask:0xf bank_mask:0xc")

def allred_rows(a, op, v, t):
    a.e(f"v_mov_b32 v{t}, v{v}")
    a.nop(2)
    a.e(f"v_permlane16_swap_b32 v{v}, v{t}")
    a.e(f"{op} v{v}, v{v}, v{t}")
    a.e(f"v_mov_b32 v{t}, v{v}")
    a.nop(2)
    a.e(f"v_permlane32_swap_b32 v{v}, v{t}")
    a.e(f"{op} v{v}, v{v}, v{t}")

def allred_hi(a, op, v, t):
    a.nop(2)
    a.e(f"{op}_dpp v{v}, v{v}, v{v} row_ror:8 row_mask:0xf bank_mask:0xf")
    allred_rows(a, op, v, t)

def reduce4_rows(a, P):
    a.nop(2)
    a.e(f"v_permlane32_swap_b32 v{P}, v{P+2}")
    a.e(f"v_permlane32_swap_b32 v{P+1}, v{P+3}")
    a.e(f"v_add_f32 v{P}, v{P}, v{P+2}")
    a.e(f"v_add_f32 v{P+1}, v{P+1}, v{P+3}")
    a.nop(2)
    a.e(f"v_permlane16_swap_b32 v{P}, v{P+1}")
    a.e(f"v_add_f32 v{P}, v{P}, v{P+1}")

def stamp(a, opt, k):
    if opt.ts:
        p = TS_PAIRS[k]
        a.e(f"s_memrealtime s[{p}:{p+1}]")

def forms(a, src, odd, lo, hi):
    if not odd:
        a.e(f"v_and_b32 v{lo}, 0xffff, v{src}")
        a.e(f"v_lshlrev_b32 v{hi}, 16, v{src}")
    else:
        a.e(f"v_lshrrev_b32 v{lo}, 16, v{src}")
        a.e(f"v_and_b32 v{hi}, 0xffff0000, v{src}")

def pv(a, base, acc, lo, hi):
    for j in range(3):
        for i in range(4):
            w = base + 4*j + i
            a.e(f"v_dot2c_f32_bf16 v{acc+8*j+2*i}, v{w}, v{lo}")
            a.e(f"v_dot2c_f32_bf16 v{acc+8*j+2*i+1}, v{w}, v{hi}")

def tagcheck(a, P, t, dst):
    a.e(f"v_xor_b32 v{t}, v{P}, v{V_TAG8}")
    a.e(f"v_xor_b32 v{t+1}, v{P+1}, v{V_TAG8}")
    a.e(f"v_xor_b32 v{t+2}, v{P+2}, v{V_TAG8}")
    a.e(f"v_xor_b32 v{t+3}, v{P+3}, v{V_TAG8}")
    a.e(f"v_or3_b32 v{t}, v{t}, v{t+1}, v{t+2}")
    a.e(f"v_or_b32 v{t}, v{t}, v{t+3}")
    a.e(f"v_and_b32 v{t}, v{V_FF}, v{t}")
    a.e(f"v_cmp_ne_u32 {dst}, 0, v{t}")

def gen(opt):
    a = A()
    nt = " nt" if opt.nt else ""
    a.lines.append(f"; @launch grid=({opt.grid},1,1) block=(512,1,1) lds={L_SIZE}")
    a.lines.append('.amdgcn_target "amdgcn-amd-amdhsa--gfx950"')
    a.lines.append(".text")
    a.lines.append(f".globl {KNAME}")
    a.lines.append(".p2align 8")
    a.lines.append(f".type {KNAME},@function")
    a.label(KNAME)
    a.e("s_cmp_ge_u32 s2, 256")
    a.e("s_cbranch_scc1 L_end")
    a.e("s_load_dwordx16 s[4:19], s[0:1], 0")
    stamp(a, opt, 0)
    if opt.map == 1:
        a.e(f"s_lshr_b32 s{S_H}, s2, 3")
        a.e(f"s_and_b32 s{S_I}, s2, 7")
    elif opt.map == 2:
        a.e(f"s_lshr_b32 s{S_H}, s2, 3")
        a.e(f"s_and_b32 s{S_T}, s2, 7")
        a.e(f"s_bcnt1_i32_b32 s{S_T+1}, s{S_T}")
        a.e(f"s_and_b32 s{S_T+1}, s{S_T+1}, 1")
        a.e(f"s_lshl_b32 s{S_T+1}, s{S_T+1}, 2")
        a.e(f"s_lshr_b32 s{S_T}, s{S_T}, 1")
        a.e(f"s_add_u32 s{S_I}, s{S_T}, s{S_T+1}")
    else:
        a.e(f"s_and_b32 s{S_T}, s2, 7")
        a.e(f"s_lshr_b32 s{S_T+1}, s2, 3")
        a.e(f"s_and_b32 s{S_T+2}, s{S_T+1}, 3")
        a.e(f"s_lshl_b32 s{S_T+2}, s{S_T+2}, 3")
        a.e(f"s_add_u32 s{S_H}, s{S_T}, s{S_T+2}")
        a.e(f"s_lshr_b32 s{S_I}, s{S_T+1}, 2")
    a.e(f"s_lshr_b32 s{S_B}, s{S_I}, 2")
    a.e(f"s_lshl_b32 s{S_REC}, s{S_H}, 3")
    a.e(f"s_add_u32 s{S_REC}, s{S_REC}, s{S_I}")
    a.e(f"s_lshr_b32 s{S_RQ}, s{S_I}, 1")
    a.e(f"s_and_b32 s{S_CH}, s{S_I}, 1")
    a.e(f"v_and_b32 v{V_LANE}, 63, v{V_TID}")
    a.e(f"v_lshrrev_b32 v{V_T0}, 6, v{V_TID}")
    a.e(f"v_lshrrev_b32 v{V_T1}, 3, v{V_LANE}")
    a.e(f"v_and_b32 v{V_T2}, 7, v{V_LANE}")
    a.e(f"v_readfirstlane_b32 s{S_W}, v{V_T0}")
    a.e(f"v_lshlrev_b32 v{V_T2}, 4, v{V_T2}")
    a.e(f"v_mul_u32_u24 v{V_OFFKV}, 384, v{V_T1}")
    a.e(f"v_add_u32 v{V_OFFKV}, v{V_OFFKV}, v{V_T2}")
    a.e(f"v_mul_u32_u24 v{V_OFFW}, {10*12288}, v{V_T1}")
    a.e(f"v_add_u32 v{V_OFFW}, v{V_OFFW}, v{V_T2}")
    a.e(f"v_mul_u32_u24 v{V_T0}, 20, v{V_T1}")
    a.e(f"v_mov_b32 v{V_T1}, 0")
    a.e(f"v_lshlrev_b32 v{V_T2}, 2, v{V_LANE}")
    a.e("s_mov_b64 exec, 0xff")
    a.e(f"ds_write_b32 v{V_T2}, v{V_T1} offset:{L_FLAG}")
    a.e("s_mov_b64 exec, -1")
    for g in range(16):
        a.e(f"s_mov_b32 s{S_GOFF+g}, {3072*g}")
    for g in range(10):
        a.e(f"s_mov_b32 s{S_WOFF+g}, {12288*g}")
    a.e(f"v_mov_b32 v{V_OFFD}, v{V_OFFKV}")
    a.e(f"s_sub_u32 s{S_T}, s{S_W}, 1")
    a.e(f"s_mul_i32 s{S_T}, s{S_T}, {8*NSA*384}")
    a.e(f"s_sub_u32 s{S_T+1}, s{S_W}, 3")
    a.e(f"s_max_i32 s{S_T+1}, s{S_T+1}, 0")
    a.e(f"s_mul_i32 s{S_T+1}, s{S_T+1}, {8*NSB*384}")
    a.e(f"s_add_u32 s{S_T+1}, s{S_T+1}, {3*8*NSA*384}")
    a.e(f"s_sub_u32 s{S_T+2}, s{S_W}, 1")
    a.e(f"s_cmp_lt_u32 s{S_T+2}, 3")
    a.e(f"s_cselect_b32 s{S_T}, s{S_T}, s{S_T+1}")
    a.e(f"s_and_b32 s{S_T+1}, s{S_I}, 3")
    a.e(f"s_mul_i32 s{S_T+1}, s{S_T+1}, {STAT_ROWS*384}")
    a.e(f"s_add_u32 s{S_T}, s{S_T}, s{S_T+1}")
    a.e(f"v_add_u32 v{V_OFFKV}, s{S_T}, v{V_OFFKV}")
    a.e(f"s_mul_i32 s{S_T+2}, s{S_I}, 160")
    a.e(f"v_add_u32 v{V_T0}, s{S_T+2}, v{V_T0}")
    a.e(f"s_lshl_b32 s{S_T}, s{S_B}, 5")
    a.e(f"s_add_u32 s{S_T}, s{S_T}, s{S_H}")
    a.e(f"s_mul_i32 s{S_CNT}, s{S_T}, {opt.cstride}")
    a.e(f"s_add_u32 s{S_CNT}, s{S_CNT}, {WS_CNT}")
    a.e(f"s_mul_i32 s{S_T}, s{S_T}, 6291456")
    a.e(f"s_add_u32 s{S_T}, s{S_T}, 4718592")
    a.e(f"s_mul_i32 s{S_T+1}, s{S_H}, 384")
    a.e(f"s_mul_i32 s{S_T+3}, s{S_I}, {80*12288}")
    a.e(f"s_add_u32 s{S_T+1}, s{S_T+1}, s{S_T+3}")
    a.e(f"s_mul_i32 s{S_T+2}, s{S_H}, {192*1280}")
    a.e(f"s_mul_i32 s{S_T+3}, s{S_RQ}, {48*1280}")
    a.e(f"s_add_u32 s{S_T+2}, s{S_T+2}, s{S_T+3}")
    a.e(f"s_mul_i32 s{S_T+3}, s{S_CH}, 640")
    a.e(f"s_add_u32 s{S_T+2}, s{S_T+2}, s{S_T+3}")
    a.e("s_waitcnt lgkmcnt(0)")
    a.e(f"s_load_dword s{S_EPOCH}, s[{S_WS}:{S_WS+1}], {WS_EPOCH}")
    a.e("s_barrier")
    def srd(R, P, off_s, nbytes):
        if off_s is None:
            a.e(f"s_mov_b32 s{R}, s{P}")
            a.e(f"s_mov_b32 s{R+1}, s{P+1}")
        else:
            a.e(f"s_add_u32 s{R}, s{P}, s{off_s}")
            a.e(f"s_addc_u32 s{R+1}, s{P+1}, 0")
        a.e(f"s_mov_b32 s{R+2}, {nbytes}")
        a.e(f"s_mov_b32 s{R+3}, 0x00020000")
    srd(R_K, S_K, S_T, 4096*384)
    srd(R_WQ, S_WQ, S_T+1, 79*12288+384)
    srd(R_X, S_X, None, 2560)
    srd(R_V, S_V, S_T, 4096*384)
    srd(R_WO, S_WO, S_T+2, 47*1280+640)
    srd(R_WS, S_WS, None, WS_SIZE)
    srd(R_OUT, S_OUT, None, 2560)

    def load_grp(kind, g, sl, thr=None):
        R, voff, soff, fl = {"K": (R_K, V_OFFKV, S_GOFF + g, nt), "V": (R_V, V_OFFKV, S_GOFF + g, nt),
                             "W": (R_WQ, V_OFFW, S_WOFF + g, nt)}[kind]
        for j in range(3):
            if thr is None: thr = (kind == "K" and g < opt.tgroups)
            if opt.fine and thr: a.throttle(opt.fine, 1)
            a.vmem(f"buffer_load_dwordx4 {vr(slot(sl)+4*j,4)}, v{voff}, {sr(R,4)}, s{soff} offen offset:{128*j}{fl}", (kind, g))

    a.e(f"s_cmp_eq_u32 s{S_W}, 0")
    a.e("s_cbranch_scc0 L_main")
    a.c("wave 0: q projection partial + exchange")
    if opt.noq:
        a.e(f"s_and_b32 s{S_T+4}, s{S_I}, 3")
        a.e(f"s_cmp_eq_u32 s{S_T+4}, 0")
        a.e("s_cbranch_scc0 L_noinit0")
        a.e(f"v_mov_b32 v{V_T1}, 0")
        a.e("s_mov_b64 exec, 1")
        a.e(f"buffer_store_dword v{V_T1}, v{V_T1}, {sr(R_WS,4)}, s{S_CNT} offen sc1")
        a.e("s_mov_b64 exec, -1")
        a.e("s_waitcnt vmcnt(0)")
        a.label("L_noinit0")
        a.e(f"s_sleep {opt.noq}")
        a.e(f"v_mov_b32 v{V_T0}, 0")
        a.e(f"v_mov_b32 v{V_T2}, 1")
        a.e("s_mov_b64 exec, 1")
        a.e(f"ds_write_b32 v{V_T0}, v{V_T2} offset:{L_FLAG}")
        a.e("s_mov_b64 exec, -1")
        stamp(a, opt, 1)
        stamp(a, opt, 2)
        a.e("s_branch L_mainB")
    X1 = slot(10)
    F1 = slot(10) + 6
    ACC1 = slot(11)
    a.vmem(f"buffer_load_dwordx4 {vr(slot(13),4)}, v{V_T0}, {sr(R_X,4)}, 0 offen", "x")
    X0 = slot(13)
    a.vmem(f"buffer_load_dword v{X0+4}, v{V_T0}, {sr(R_X,4)}, 0 offen offset:16", "x")
    a.vmem(f"buffer_load_dwordx4 {vr(X1,4)}, v{V_T0}, {sr(R_X,4)}, 0 offen offset:1280", "x")
    a.vmem(f"buffer_load_dword v{X1+4}, v{V_T0}, {sr(R_X,4)}, 0 offen offset:1296", "x")
    a.e(f"s_and_b32 s{S_T+4}, s{S_I}, 3")
    a.e(f"s_cmp_eq_u32 s{S_T+4}, 0")
    a.e("s_cbranch_scc0 L_noinit")
    a.e(f"v_mov_b32 v{V_T1}, 0")
    a.e("s_mov_b64 exec, 1")
    a.e(f"buffer_store_dword v{V_T1}, v{V_T1}, {sr(R_WS,4)}, s{S_CNT} offen sc1")
    a.e("s_mov_b64 exec, -1")
    a.label("L_noinit")
    for g in range(10):
        load_grp("W", g, g)
    for r in range(24):
        a.e(f"v_mov_b32 v{V_ACC+r}, 0")
        a.e(f"v_mov_b32 v{ACC1+r}, 0")
    for g in range(10):
        a.wait_vm(("W", g))
        forms(a, X0 + g//2, g % 2, V_T0, V_T1)
        forms(a, X1 + g//2, g % 2, F1, F1+1)
        pv(a, slot(g), V_ACC, V_T0, V_T1)
        pv(a, slot(g), ACC1, F1, F1+1)
    reduce24(a, V_ACC)
    reduce24(a, ACC1)
    a.e("s_waitcnt lgkmcnt(0)")
    a.e(f"s_add_u32 s{S_TAG}, s{S_EPOCH}, 1")
    G0, G1 = V_Q, V_Q + 4
    for j in range(3):
        a.e(f"v_mov_b32 v{G0+j}, v{V_ACC+8*j}")
        a.e(f"v_mov_b32 v{G1+j}, v{ACC1+8*j}")
    a.e(f"v_mov_b32 v{G0+3}, s{S_TAG}")
    a.e(f"v_mov_b32 v{G1+3}, s{S_TAG}")
    a.e(f"v_lshlrev_b32 v{V_T1}, 4, v{V_LANE}")
    a.e(f"s_lshl_b32 s{S_T}, s{S_H}, 14")
    a.e(f"s_add_u32 s{S_T}, s{S_T}, {WS_QX}")
    a.e(f"s_lshl_b32 s{S_T+1}, s{S_I}, 10")
    a.e(f"s_add_u32 s{S_T+1}, s{S_T+1}, s{S_T}")
    a.e(f"s_add_u32 s{S_T+2}, s{S_T+1}, 8192")
    a.e(f"buffer_store_dwordx4 {vr(G0,4)}, v{V_T1}, {sr(R_WS,4)}, s{S_T+1} offen sc1")
    a.e(f"buffer_store_dwordx4 {vr(G1,4)}, v{V_T1}, {sr(R_WS,4)}, s{S_T+2} offen sc1")
    if opt.ts in (1, 8): stamp(a, opt, 1)
    a.e(f"s_lshl_b32 s{S_T+1}, s{S_B}, 13")
    a.e(f"s_add_u32 s{S_T}, s{S_T}, s{S_T+1}")
    a.e(f"s_add_u32 s{S_T+1}, s{S_T}, 4096")
    GA = slot(0)
    QM = S_GOFF
    QM = S_WOFF
    qmask = [68, 70, 72, 74, 76, 84, 86, 88]
    for i in range(8):
        a.e(f"s_mov_b64 s[{qmask[i]}:{qmask[i]+1}], -1")
    a.e(f"s_mov_b32 s{S_SPIN}, 0")
    if opt.qdelay: a.e(f"s_sleep {opt.qdelay}")
    a.label("L_qpoll")
    for i in range(8):
        a.e(f"s_mov_b64 exec, s[{qmask[i]}:{qmask[i]+1}]")
        a.e(f"s_cbranch_execz L_qs{i}")
        a.e(f"buffer_load_dwordx4 {vr(GA+4*i,4)}, v{V_T1}, {sr(R_WS,4)}, s{S_T + (i//4)} offen offset:{1024*(i%4)} sc1")
        a.label(f"L_qs{i}")
    a.e("s_mov_b64 exec, -1")
    a.e("s_waitcnt vmcnt(0)")
    for i in range(8):
        a.e(f"v_cmp_ne_u32 s[{qmask[i]}:{qmask[i]+1}], s{S_TAG}, v{GA+4*i+3}")
    a.nop(5)
    a.e(f"s_or_b64 vcc, s[{qmask[0]}:{qmask[0]+1}], s[{qmask[1]}:{qmask[1]+1}]")
    for i in range(2, 8):
        a.e(f"s_or_b64 vcc, vcc, s[{qmask[i]}:{qmask[i]+1}]")
    a.e("s_cbranch_scc0 L_qok")
    a.e(f"s_add_u32 s{S_SPIN}, s{S_SPIN}, 1")
    a.e(f"s_cmp_gt_u32 s{S_SPIN}, {SPINMAX}")
    a.e("s_cbranch_scc1 L_qok")
    if opt.qsleep: a.e(f"s_sleep {opt.qsleep}")
    a.e("s_branch L_qpoll")
    a.label("L_qok")
    if opt.ts in (1, 8): stamp(a, opt, 2)
    for j in range(3):
        a.e(f"v_add_f32 v{GA+j}, v{GA+j}, v{GA+4+j}")
        a.e(f"v_add_f32 v{GA+8+j}, v{GA+8+j}, v{GA+12+j}")
        a.e(f"v_add_f32 v{GA+16+j}, v{GA+16+j}, v{GA+20+j}")
        a.e(f"v_add_f32 v{GA+24+j}, v{GA+24+j}, v{GA+28+j}")
    for j in range(3):
        a.e(f"v_add_f32 v{GA+j}, v{GA+j}, v{GA+8+j}")
        a.e(f"v_add_f32 v{GA+16+j}, v{GA+16+j}, v{GA+24+j}")
    for j in range(3):
        a.e(f"v_add_f32 v{GA+j}, v{GA+j}, v{GA+16+j}")
    for j in range(3):
        a.e(f"v_cvt_pk_bf16_f32 v{GA+j}, v{GA+j}, v{GA+j}")
    a.e(f"v_and_b32 v{V_T0}, 7, v{V_LANE}")
    a.e(f"v_lshlrev_b32 v{V_T0}, 4, v{V_T0}")
    a.e(f"v_lshrrev_b32 v{V_T2}, 3, v{V_LANE}")
    a.e(f"v_lshl_add_u32 v{V_T0}, v{V_T2}, 1, v{V_T0}")
    for j in range(3):
        a.e(f"ds_write_b16 v{V_T0}, v{GA+j} offset:{L_QBF+128*j}")
    a.e(f"v_mov_b32 v{V_T0}, 0")
    a.e(f"v_mov_b32 v{V_T2}, 1")
    a.e("s_waitcnt lgkmcnt(0)")
    a.e("s_mov_b64 exec, 1")
    a.e(f"ds_write_b32 v{V_T0}, v{V_T2} offset:{L_FLAG}")
    a.e("s_mov_b64 exec, -1")
    a.vm = []
    def pre_q(NS, sfx, dyn=False):
        for g in range(NS):
            load_grp("K", g, g)
        if dyn:
            for g in range(NS - 4):
                load_grp("V", g, NS + g, thr=(NS + g < opt.tgroups))
        a.c("wo slice LDS-DMA: idx = tid + 512k ; row = idx/40 ; voff = 16*idx + 640*row")
        for k in range(4):
            t = V_ACC + 2*k
            a.e(f"v_add_u32 v{t}, {512*k}, v{V_TID}")
            a.e(f"v_mul_u32_u24 v{t+1}, 52429, v{t}")
            a.e(f"v_lshrrev_b32 v{t+1}, 21, v{t+1}")
            a.e(f"v_mul_u32_u24 v{t+1}, 640, v{t+1}")
            a.e(f"v_lshl_add_u32 v{t}, v{t}, 4, v{t+1}")
        a.e(f"s_lshl_b32 s{S_T+6}, s{S_W}, 10")
        for k in range(4):
            t = V_ACC + 2*k
            a.e(f"s_add_u32 m0, s{S_T+6}, {L_WO + 8192*k}")
            a.e("s_nop 0")
            if not opt.nowo: a.vmem(f"buffer_load_dwordx4 v{t}, {sr(R_WO,4)}, 0 offen{nt} lds", "wo")
        a.e(f"v_and_b32 v{V_T0}, 7, v{V_LANE}")
        a.e(f"v_lshlrev_b32 v{V_T1}, 5, v{V_T0}")
        a.e(f"v_lshrrev_b32 v{V_T2}, 3, v{V_LANE}")
        a.e(f"v_lshl_add_u32 v{V_T1}, v{V_T2}, 2, v{V_T1}")
        a.e(f"s_lshl_b32 s{S_T}, s{S_W}, 10")
        a.e(f"v_add_u32 v{V_LDSP}, s{S_T}, v{V_T1}")
        for g in range(NS):
            a.e(f"v_mov_b32 v{V_S+g}, 0")
        if opt.ts in (1, 8):
            a.e(f"s_cmp_eq_u32 s{S_W}, 0")
            a.e(f"s_cbranch_scc1 L_nost0{sfx}")
            stamp(a, opt, 1)
            a.label(f"L_nost0{sfx}")
        a.e(f"v_mov_b32 v{V_T2}, 0")
        a.e(f"s_mov_b32 s{S_SPIN}, 0")
        a.label(f"L_qwait{sfx}")
        a.e(f"ds_read_b32 v{V_T1}, v{V_T2} offset:{L_FLAG}")
        a.e("s_waitcnt lgkmcnt(0)")
        a.e(f"v_cmp_ne_u32 vcc, 1, v{V_T1}")
        a.nop(5)
        a.e("s_cmp_eq_u64 vcc, 0")
        a.e(f"s_cbranch_scc1 L_qready{sfx}")
        a.e(f"s_add_u32 s{S_SPIN}, s{S_SPIN}, 1")
        a.e(f"s_cmp_gt_u32 s{S_SPIN}, {SPINMAX*16}")
        a.e(f"s_cbranch_scc1 L_qready{sfx}")
        a.e("s_sleep 4")
        a.e(f"s_branch L_qwait{sfx}")
        a.label(f"L_qready{sfx}")
        a.e(f"v_lshlrev_b32 v{V_T0}, 4, v{V_T0}")
        for j in range(3):
            a.e(f"ds_read_b128 {vr(V_Q+4*j,4)}, v{V_T0} offset:{L_QBF+128*j}")
        a.e(f"s_add_u32 s{S_TAG}, s{S_EPOCH}, 1")
        a.e(f"s_and_b32 s{S_T}, s{S_TAG}, 0xff")
        a.e(f"v_mov_b32 v{V_TAG8}, s{S_T}")
        a.e(f"v_mov_b32 v{V_FF}, 0xff")
        if dyn:
            atomic()
            for g in range(NS - 4, NS):
                load_grp("V", g, NS + g)
            a.e(f"s_lshl_b32 s{S_T}, s{S_W}, 2")
            a.e(f"v_mov_b32 v{V_T1}, s{S_T}")
            a.e(f"v_mov_b32 v{V_T2}, 1")
            a.e("s_mov_b64 exec, 1")
            a.e(f"ds_write_b32 v{V_T1}, v{V_T2} offset:{L_SFLAG-16}")
            a.e("s_mov_b64 exec, -1")
        a.e("s_waitcnt lgkmcnt(0)")
        if opt.ts in (1, 8):
            a.e(f"s_cmp_eq_u32 s{S_W}, 0")
            a.e(f"s_cbranch_scc1 L_nost{sfx}")
            stamp(a, opt, 2)
            a.label(f"L_nost{sfx}")

    V_IDX = V_T2 + 0
    V_IDX = V_S + 15
    def atomic():
        a.e(f"v_mov_b32 v{V_IDX}, 1")
        a.e(f"v_mov_b32 v{V_IDX-1}, 0")
        a.e("s_mov_b64 exec, 1")
        a.vmem(f"buffer_atomic_add v{V_IDX}, v{V_IDX-1}, {sr(R_WS,4)}, s{S_CNT} offen sc0 sc1", "atom")
        a.e("s_mov_b64 exec, -1")

    def k_phase(NS, dyn):
        a.c("K phase")
        for g in range(NS):
            a.wait_vm(("K", g))
            for j in range(3):
                for i in range(4):
                    a.e(f"v_dot2c_f32_bf16 v{V_S+g}, v{slot(g)+4*j+i}, v{V_Q+4*j+i}")
            if not dyn:
                load_grp("V", g, g)

    def round_scores(regs, T):
        n = len(regs) // 2
        for k in range(n):
            a.e(f"v_cvt_pk_bf16_f32 v{T+k}, v{regs[2*k]}, v{regs[2*k+1]}")
        for k in range(n):
            a.e(f"v_lshlrev_b32 v{regs[2*k]}, 16, v{T+k}")
            a.e(f"v_and_b32 v{regs[2*k+1]}, 0xffff0000, v{T+k}")
        for r in regs:
            a.e(f"v_mul_f32 v{r}, 0x{SCALE:08x}, v{r}")
        for k in range(n):
            a.e(f"v_cvt_pk_bf16_f32 v{T+k}, v{regs[2*k]}, v{regs[2*k+1]}")
        for k in range(n):
            a.e(f"v_lshlrev_b32 v{regs[2*k]}, 16, v{T+k}")
            a.e(f"v_and_b32 v{regs[2*k+1]}, 0xffff0000, v{T+k}")

    def finish_l():
        allred_hi(a, "v_add_f32", V_L, V_T0)
        a.e(f"v_mul_f32 v{V_T2}, 0x{LOG2E:08x}, v{V_MC}")
        a.e(f"s_lshl_b32 s{S_T}, s{S_W}, 10")
        a.e(f"v_mov_b32 v{V_T0}, s{S_T}")
        a.e(f"s_lshl_b32 s{S_T}, s{S_W}, 2")
        a.e(f"v_mov_b32 v{V_T1}, s{S_T}")
        a.e("s_mov_b64 exec, 1")
        a.e(f"ds_write_b32 v{V_T0}, v{V_L} offset:{L_PART+768}")
        a.e(f"ds_write_b32 v{V_T1}, v{V_T2} offset:{L_M}")
        a.e("s_mov_b64 exec, -1")
        c16, g16 = V_T0, V_T1
        a.e(f"v_and_b32 v{c16}, 15, v{V_LANE}")
        a.e(f"v_lshrrev_b32 v{g16}, 4, v{V_LANE}")
        a.e(f"v_mul_u32_u24 v{AD_FIN}, 192, v{g16}")
        a.e(f"v_lshl_add_u32 v{AD_FIN}, v{c16}, 4, v{AD_FIN}")
        a.e(f"v_mov_b32 v{V_T2}, 768")
        a.e(f"v_cmp_gt_u32 vcc, 12, v{c16}")
        a.e(f"v_lshlrev_b32 v{AD_L16}, 4, v{V_LANE}")
        a.e(f"v_lshlrev_b32 v{AD_H1}, 10, v{g16}")
        a.e(f"v_cndmask_b32 v{AD_FIN}, v{V_T2}, v{AD_FIN}, vcc")
        a.e(f"v_lshl_add_u32 v{AD_H1}, v{c16}, 4, v{AD_H1}")
        a.e(f"v_lshlrev_b32 v{AD_OBW}, 3, v{c16}")
        a.e(f"v_lshl_add_u32 v{AD_OBW}, v{g16}, 1, v{AD_OBW}")
        a.e(f"s_lshl_b32 s{S_T}, s{S_W}, 7")
        a.e(f"v_add_u32 v{AD_OBW}, s{S_T}, v{AD_OBW}")
        a.e(f"v_and_b32 v{V_T2}, 1, v{V_LANE}")
        a.e(f"v_lshlrev_b32 v{AD_B}, 7, v{V_T2}")
        a.e(f"v_lshl_add_u32 v{AD_B}, v{g16}, 3, v{AD_B}")
        a.e(f"v_mul_u32_u24 v{AD_ST}, {40*8192}, v{V_T2}")
        a.e(f"v_lshl_add_u32 v{AD_ST}, v{g16}, 4, v{AD_ST}")
        a.e(f"v_lshlrev_b32 v{AD_TR}, 2, v{g16}")
        a.e(f"v_bfe_u32 v{V_T2}, v{V_LANE}, 2, 2")
        a.e(f"v_add_u32 v{AD_TR}, v{AD_TR}, v{V_T2}")
        a.e(f"v_mul_u32_u24 v{AD_TR}, 640, v{AD_TR}")
        a.e(f"v_and_b32 v{V_T2}, 3, v{V_LANE}")
        a.e(f"v_lshl_add_u32 v{AD_TR}, v{V_T2}, 3, v{AD_TR}")
        a.e(f"s_lshl_b32 s{S_T}, s{S_W}, 5")
        a.e(f"v_add_u32 v{AD_TR}, s{S_T}, v{AD_TR}")
        a.e(f"v_mov_b32 v{AD_ZERO}, 0")
        a.e(f"v_lshlrev_b32 v{AD_FW}, 4, v{V_T2}")
        a.e(f"v_lshl_add_u32 v{AD_FW}, v{g16}, 2, v{AD_FW}")
        a.e(f"s_lshl_b32 s{S_T}, s{S_W}, 6")
        a.e(f"v_add_u32 v{AD_FW}, s{S_T}, v{AD_FW}")
        a.e(f"s_lshl_b32 s{SX_REC}, s{S_REC}, 10")
        a.e(f"s_add_u32 s{SX_REC}, s{SX_REC}, {WS_H1}")
        a.e(f"s_lshl_b32 s{SX_H1}, s{S_H}, 3")
        a.e(f"s_lshl_b32 s{S_T}, s{S_W}, 2")
        a.e(f"s_add_u32 s{SX_H1}, s{SX_H1}, s{S_T}")
        a.e(f"s_lshl_b32 s{SX_H1}, s{SX_H1}, 10")
        a.e(f"s_lshl_b32 s{S_T}, s{S_RQ}, 8")
        a.e(f"s_add_u32 s{SX_H1}, s{SX_H1}, s{S_T}")
        a.e(f"s_add_u32 s{SX_H1}, s{SX_H1}, {WS_H1}")
        a.e(f"s_mul_i32 s{SX_ST}, s{S_CH}, 20")
        a.e(f"s_add_u32 s{SX_ST}, s{SX_ST}, s{S_W}")
        a.e(f"s_lshl_b32 s{SX_ST}, s{SX_ST}, 13")
        a.e(f"s_lshl_b32 s{S_T}, s{S_H}, 2")
        a.e(f"s_add_u32 s{S_T}, s{S_T}, s{S_RQ}")
        a.e(f"s_lshl_b32 s{S_T}, s{S_T}, 6")
        a.e(f"s_add_u32 s{SX_ST}, s{SX_ST}, s{S_T}")
        a.e(f"s_add_u32 s{SX_ST}, s{SX_ST}, {WS_H2}")
        a.e(f"s_add_u32 s{SX_ST+1}, s{SX_ST}, 65536")
        a.e(f"s_add_u32 s{SX_ST+2}, s{SX_ST}, 131072")
        a.e(f"s_lshl_b32 s{SX_H2}, s{S_REC}, 13")
        a.e(f"s_lshl_b32 s{S_T}, s{S_W}, 10")
        a.e(f"s_add_u32 s{SX_H2}, s{SX_H2}, s{S_T}")
        a.e(f"s_add_u32 s{SX_H2}, s{SX_H2}, {WS_H2}")
        a.e(f"s_cmp_ge_u32 s{S_REC}, 40")
        a.e(f"s_cselect_b32 s{S_T}, 40, 0")
        a.e(f"s_cselect_b32 s{S_T+1}, 1280, 0")
        a.e(f"s_sub_u32 s{SX_OUT}, s{S_REC}, s{S_T}")
        a.e(f"s_lshl_b32 s{SX_OUT}, s{SX_OUT}, 5")
        a.e(f"s_add_u32 s{SX_OUT}, s{SX_OUT}, s{S_T+1}")

    def softmax(NS):
        a.c("softmax")
        a.nop(3)
        for ctl in ["quad_perm:[1,0,3,2]", "quad_perm:[2,3,0,1]", "row_half_mirror"]:
            for g in range(NS):
                a.e(f"v_add_f32_dpp v{V_S+g}, v{V_S+g}, v{V_S+g} {ctl} row_mask:0xf bank_mask:0xf")
        round_scores([V_S+g for g in range(NS)], V_ACC)
        M = V_MC
        a.e(f"v_max3_f32 v{M}, v{V_S}, v{V_S+1}, v{V_S+2}")
        k = 3
        while k + 1 < NS:
            a.e(f"v_max3_f32 v{M}, v{M}, v{V_S+k}, v{V_S+k+1}")
            k += 2
        if k < NS:
            a.e(f"v_max_f32 v{M}, v{M}, v{V_S+k}")
        allred_hi(a, "v_max_f32", M, V_T0)
        for g in range(NS):
            a.e(f"v_sub_f32 v{V_S+g}, v{V_S+g}, v{M}")
        for g in range(NS):
            a.e(f"v_mul_f32 v{V_S+g}, 0x{LOG2E:08x}, v{V_S+g}")
        for g in range(NS):
            a.e(f"v_exp_f32 v{V_S+g}, v{V_S+g}")
        a.e("s_nop 0")
        a.e(f"v_add_f32 v{V_L}, v{V_S}, v{V_S+1}")
        for g in range(2, NS):
            a.e(f"v_add_f32 v{V_L}, v{V_L}, v{V_S+g}")
        for k in range(NS//2):
            a.e(f"v_cvt_pk_bf16_f32 v{V_S+k}, v{V_S+2*k}, v{V_S+2*k+1}")
        for r in range(24):
            a.e(f"v_mov_b32 v{V_ACC+r}, 0")

    def v_phase(g0, g1, base=0):
        for g in range(g0, g1):
            a.wait_vm(("V", g))
            forms(a, V_S + g//2, g % 2, V_T0, V_T1)
            pv(a, slot(base + g), V_ACC, V_T0, V_T1)

    S_SOF = S_T + 2
    def issue_task(buf, name):
        if opt.ts: a.e("s_add_u32 s77, s77, 1")
        a.e(f"s_mul_i32 s{S_SOF}, s{S_T}, 6144")
        a.e(f"s_add_u32 s{S_SOF}, s{S_SOF}, {POOL_ROW0*384}")
        a.e(f"s_add_u32 s{S_SOF+1}, s{S_SOF}, 3072")
        atomic()
        for (R, off, kind) in [(R_K, 0, "tk"), (R_V, 2, "tv")]:
            for gg in range(2):
                for j in range(3):
                    a.vmem(f"buffer_load_dwordx4 {vr(slot(buf+off+gg)+4*j,4)}, v{V_OFFD}, {sr(R,4)}, s{S_SOF+gg} offen offset:{128*j}{nt}", (kind, name))

    def get_idx(lbl_invalid):
        a.wait_vm("atom")
        a.e(f"v_readfirstlane_b32 s{S_T}, v{V_IDX}")
        a.nop(4)
        a.e(f"s_cmp_ge_u32 s{S_T}, {NTASK}")
        a.e(f"s_cbranch_scc1 {lbl_invalid}")

    def do_task(buf, name, last, uid):
        s0, s1 = V_S, V_S + 1
        t = V_S + 2
        a.e(f"v_mov_b32 v{s0}, 0")
        a.e(f"v_mov_b32 v{s1}, 0")
        a.wait_vm(("tk", name))
        for i in range(12):
            a.e(f"v_dot2c_f32_bf16 v{s0}, v{slot(buf)+i}, v{V_Q+i}")
            a.e(f"v_dot2c_f32_bf16 v{s1}, v{slot(buf+1)+i}, v{V_Q+i}")
        a.nop(3)
        for ctl in ["quad_perm:[1,0,3,2]", "quad_perm:[2,3,0,1]", "row_half_mirror"]:
            a.e(f"v_add_f32_dpp v{s0}, v{s0}, v{s0} {ctl} row_mask:0xf bank_mask:0xf")
            a.e(f"v_add_f32_dpp v{s1}, v{s1}, v{s1} {ctl} row_mask:0xf bank_mask:0xf")
            a.nop(1)
        round_scores([s0, s1], t)
        mn = t + 1
        a.e(f"v_max_f32 v{mn}, v{s0}, v{s1}")
        allred_hi(a, "v_max_f32", mn, t + 2)
        a.e(f"v_cmp_gt_f32 vcc, v{mn}, v{V_MC}")
        a.nop(5)
        a.e("s_cmp_eq_u64 vcc, 0")
        a.e(f"s_cbranch_scc1 L_nors{uid}")
        a.e(f"v_sub_f32 v{t+2}, v{V_MC}, v{mn}")
        a.e(f"v_mul_f32 v{t+2}, 0x{LOG2E:08x}, v{t+2}")
        a.e(f"v_exp_f32 v{t+2}, v{t+2}")
        a.e(f"v_mov_b32 v{V_MC}, v{mn}")
        a.e(f"v_mul_f32 v{V_L}, v{t+2}, v{V_L}")
        for r in range(24):
            a.e(f"v_mul_f32 v{V_ACC+r}, v{t+2}, v{V_ACC+r}")
        a.label(f"L_nors{uid}")
        a.e(f"v_sub_f32 v{s0}, v{s0}, v{V_MC}")
        a.e(f"v_sub_f32 v{s1}, v{s1}, v{V_MC}")
        a.e(f"v_mul_f32 v{s0}, 0x{LOG2E:08x}, v{s0}")
        a.e(f"v_mul_f32 v{s1}, 0x{LOG2E:08x}, v{s1}")
        a.e(f"v_exp_f32 v{s0}, v{s0}")
        a.e(f"v_exp_f32 v{s1}, v{s1}")
        a.e("s_nop 0")
        a.e(f"v_add_f32 v{V_L}, v{V_L}, v{s0}")
        a.e(f"v_add_f32 v{V_L}, v{V_L}, v{s1}")
        a.e(f"v_cvt_pk_bf16_f32 v{t}, v{s0}, v{s1}")
        forms(a, t, 0, t+1, t+2)
        forms(a, t, 1, t+3, t+4)
        if last:
            finish_l()
        a.wait_vm(("tv", name))
        pv(a, slot(buf+2), V_ACC, t+1, t+2)
        pv(a, slot(buf+3), V_ACC, t+3, t+4)

    a.e("s_branch L_mainB")
    a.label("L_main")
    a.e(f"s_cmp_lt_u32 s{S_W}, 4")
    a.e("s_cbranch_scc0 L_mainB")
    if opt.ts: a.e("s_mov_b32 s77, 0")
    pre_q(NSA, "A")
    k_phase(NSA, False)
    softmax(NSA)
    v_phase(0, NSA)
    if opt.ajoin:
        a.e(f"s_lshl_b32 s{S_T}, s{S_W}, 2")
        a.e(f"v_mov_b32 v{V_T2}, s{S_T}")
        a.e(f"s_mov_b32 s{S_SPIN}, 0")
        a.label("L_pwait")
        a.e(f"ds_read_b32 v{V_T1}, v{V_T2} offset:{L_SFLAG}")
        a.e("s_waitcnt lgkmcnt(0)")
        a.e(f"v_cmp_ne_u32 vcc, 1, v{V_T1}")
        a.nop(5)
        a.e("s_cmp_eq_u64 vcc, 0")
        a.e(f"s_cbranch_scc1 L_pok")
        a.e(f"s_add_u32 s{S_SPIN}, s{S_SPIN}, 1")
        a.e(f"s_cmp_gt_u32 s{S_SPIN}, {SPINMAX*16}")
        a.e(f"s_cbranch_scc1 L_pok")
        a.e("s_sleep 8")
        a.e(f"s_branch L_pwait")
        a.label("L_pok")
        a.vm = []
        atomic()
        get_idx("L_notaskA")
        issue_task(0, "X")
        a.e("s_branch L_loopX")
        a.label("L_notaskA")
    finish_l()
    a.e("s_branch L_vdone")
    a.label("L_mainB")
    a.vm = []
    if opt.ts: a.e("s_mov_b32 s77, 0")
    pre_q(NSB, "B", True)
    k_phase(NSB, True)
    softmax(NSB)
    get_idx("L_notask")
    vm_save = list(a.vm)
    issue_task(0, "X")
    v_phase(0, NSB, NSB)
    a.label("L_loopX")
    vm_top = ["atom"] + [("tk", "X")]*6 + [("tv", "X")]*6
    assert a.vm[-13:] == vm_top, a.vm
    a.vm = list(vm_top)
    get_idx("L_lastX")
    vm_lastX = list(a.vm)
    issue_task(4, "Y")
    do_task(0, "X", False, "X")
    assert a.vm == ["atom"] + [("tk", "Y")]*6 + [("tv", "Y")]*6, a.vm
    get_idx("L_lastY")
    vm_lastY = list(a.vm)
    issue_task(0, "X")
    do_task(4, "Y", False, "Y")
    assert a.vm == vm_top
    a.e("s_branch L_loopX")
    a.label("L_lastX")
    a.vm = vm_lastX
    do_task(0, "X", True, "LX")
    a.e("s_branch L_vdone")
    a.label("L_lastY")
    a.vm = vm_lastY
    do_task(4, "Y", True, "LY")
    a.e("s_branch L_vdone")
    a.label("L_notask")
    a.vm = vm_save
    finish_l()
    v_phase(0, NSB, NSB)
    a.label("L_vdone")
    a.vm = []
    if opt.ts in (1, 8): stamp(a, opt, 3)
    if opt.ts == 4: stamp(a, opt, 1)
    reduce24(a, V_ACC)
    for j in range(3):
        a.e(f"ds_write_b32 v{V_LDSP}, v{V_ACC+8*j} offset:{L_PART+256*j}")
    a.e("s_waitcnt lgkmcnt(0)")
    a.e("s_barrier")
    a.e(f"s_cmp_eq_u32 s{S_W}, 0")
    a.e("s_cbranch_scc0 L_nopub")
    regs = [slot(8) + 4*k for k in range(8)]
    MW = V_S
    a.e(f"ds_read_b128 {vr(MW,4)}, v{AD_ZERO} offset:{L_M}")
    a.e(f"ds_read_b128 {vr(MW+4,4)}, v{AD_ZERO} offset:{L_M+16}")
    for w in range(8):
        a.e(f"ds_read_b128 {vr(regs[w],4)}, v{AD_FIN} offset:{L_PART+1024*w}")
    a.e("s_waitcnt lgkmcnt(8)")
    Mx = V_S + 8
    a.e(f"v_max3_f32 v{Mx}, v{MW}, v{MW+1}, v{MW+2}")
    a.e(f"v_max3_f32 v{Mx+1}, v{MW+3}, v{MW+4}, v{MW+5}")
    a.e(f"v_max3_f32 v{Mx}, v{Mx}, v{MW+6}, v{MW+7}")
    a.e(f"v_max_f32 v{Mx}, v{Mx}, v{Mx+1}")
    a.e(f"v_and_b32 v{Mx}, 0xffffff00, v{Mx}")
    for w in range(8):
        a.e(f"v_sub_f32 v{MW+w}, v{MW+w}, v{Mx}")
    for w in range(8):
        a.e(f"v_exp_f32 v{MW+w}, v{MW+w}")
    Y = V_S + 12
    Y2 = V_ACC
    for w in range(8):
        if w % 2 == 0: a.e(f"s_waitcnt lgkmcnt({6-w})")
        dst = Y if w % 2 == 0 else Y2
        for r in range(4):
            if w < 2:
                a.e(f"v_mul_f32 v{dst+r}, v{MW+w}, v{regs[w]+r}")
            else:
                a.e(f"v_fmac_f32 v{dst+r}, v{MW+w}, v{regs[w]+r}")
    for r in range(4):
        a.e(f"v_add_f32 v{Y+r}, v{Y+r}, v{Y2+r}")
    a.e("s_mov_b32 exec_lo, 0x10001000")
    a.e("s_mov_b32 exec_hi, 0x10001000")
    a.e(f"v_mov_b32 v{Y+1}, v{Mx}")
    a.e("s_mov_b64 exec, -1")
    for r in range(4):
        a.e(f"v_bfi_b32 v{Y+r}, v{V_FF}, v{V_TAG8}, v{Y+r}")
    a.e(f"buffer_store_dwordx4 {vr(Y,4)}, v{AD_L16}, {sr(R_WS,4)}, s{SX_REC} offen sc1")
    a.label("L_nopub")
    if not opt.notail: gen_tail(a, opt)
    if opt.ts:
        a.label("L_ts")
        if opt.ts in (1, 4, 8): stamp(a, opt, 4)
        a.e("s_waitcnt lgkmcnt(0)")
        if opt.ts == 8:
            a.e(f"s_mov_b32 s{R_X}, s{S_DBG}")
            a.e(f"s_mov_b32 s{R_X+1}, s{S_DBG+1}")
            a.e(f"s_mov_b32 s{R_X+2}, 256")
            a.e(f"s_mov_b32 s{R_X+3}, 0x00020000")
            a.e(f"v_mov_b32 v{V_T0}, 0")
            a.e("s_mov_b64 exec, 1")
            def amax(sreg, off, inv=False):
                a.e(f"v_mov_b32 v{V_T1}, s{sreg}")
                if inv: a.e(f"v_not_b32 v{V_T1}, v{V_T1}")
                a.e(f"buffer_atomic_umax v{V_T1}, v{V_T0}, {sr(R_X,4)}, 0 offen offset:{off} sc1")
                a.e("s_waitcnt vmcnt(0)")
            amax(TS_PAIRS[0], 0, True)
            amax(TS_PAIRS[0], 4)
            amax(TS_PAIRS[3], 16)
            amax(TS_PAIRS[4], 20)
            amax(TS_PAIRS[3], 28, True)
            a.e(f"s_cmp_eq_u32 s{S_W}, 0")
            a.e("s_cbranch_scc0 L_ts1")
            amax(TS_PAIRS[1], 8)
            amax(TS_PAIRS[2], 12)
            amax(TS_PAIRS[1], 32, True)
            amax(TS_PAIRS[2], 36, True)
            a.e("s_branch L_end")
            a.label("L_ts1")
            amax(TS_PAIRS[1], 24)
            a.e("s_branch L_end")
        for k in range(5):
            a.e(f"v_mov_b32 v{V_ACC+k}, s{TS_PAIRS[k]}")
        a.e(f"s_getreg_b32 s{S_T}, hwreg(HW_REG_XCC_ID)")
        a.e(f"v_mov_b32 v{V_ACC+5}, s{S_T}")
        a.e(f"s_getreg_b32 s{S_T}, hwreg(HW_REG_HW_ID)")
        a.e(f"v_mov_b32 v{V_ACC+6}, s{S_T}")
        a.e(f"v_mov_b32 v{V_ACC+7}, s77")
        a.e(f"s_lshl_b32 s{S_T}, s2, 3")
        a.e(f"s_add_u32 s{S_T}, s{S_T}, s{S_W}")
        a.e(f"s_lshl_b32 s{S_T}, s{S_T}, 6")
        a.e(f"s_add_u32 s{S_T}, s{S_T}, {WS_TS}")
        a.e(f"v_mov_b32 v{V_T0}, 0")
        a.e("s_mov_b64 exec, 1")
        a.e(f"buffer_store_dwordx4 {vr(V_ACC,4)}, v{V_T0}, {sr(R_WS,4)}, s{S_T} offen")
        a.e(f"buffer_store_dwordx4 {vr(V_ACC+4,4)}, v{V_T0}, {sr(R_WS,4)}, s{S_T} offen offset:16")
    return a

def tagmask(a, P, dst):
    a.e(f"v_cmp_ne_u32_sdwa s[{dst}:{dst+1}], v{P}, v{V_TAG8} src0_sel:BYTE_0 src1_sel:BYTE_0")
    for r in range(1, 4):
        m = SX_M + 2*(r-1)
        a.e(f"v_cmp_ne_u32_sdwa s[{m}:{m+1}], v{P+r}, v{V_TAG8} src0_sel:BYTE_0 src1_sel:BYTE_0")
    a.nop(4)
    a.e(f"s_or_b64 s[{SX_M}:{SX_M+1}], s[{SX_M}:{SX_M+1}], s[{SX_M+2}:{SX_M+3}]")
    a.e(f"s_or_b64 s[{dst}:{dst+1}], s[{dst}:{dst+1}], s[{SX_M+4}:{SX_M+5}]")
    a.e(f"s_or_b64 s[{dst}:{dst+1}], s[{dst}:{dst+1}], s[{SX_M}:{SX_M+1}]")

def poll(a, opt, name, P, voff, soff, init_lo, init_hi, sleep):
    N = SX_NEED
    a.e(f"s_mov_b32 s{N}, {init_lo}")
    a.e(f"s_mov_b32 s{N+1}, {init_hi}")
    a.e(f"s_mov_b32 s{S_SPIN}, 0")
    a.label(f"L_{name}poll")
    a.e(f"s_mov_b64 exec, s[{N}:{N+1}]")
    a.e(f"buffer_load_dwordx4 {vr(P,4)}, v{voff}, {sr(R_WS,4)}, s{soff} offen sc1")
    a.e("s_waitcnt vmcnt(0)")
    tagmask(a, P, N)
    a.e(f"s_cbranch_scc0 L_{name}ok")
    a.e(f"s_add_u32 s{S_SPIN}, s{S_SPIN}, 1")
    a.e(f"s_cmp_gt_u32 s{S_SPIN}, {SPINMAX}")
    a.e(f"s_cbranch_scc1 L_{name}ok")
    if sleep: a.e(f"s_sleep {sleep}")
    a.e(f"s_branch L_{name}poll")
    a.label(f"L_{name}ok")
    a.e("s_mov_b64 exec, -1")

def gen_tail(a, opt):
    WOA = [[slot(0) + 6*k + 2*t for t in range(3)] for k in range(3)]
    O = slot(2)
    X = V_ACC
    a.c("prefetch wo^T A-fragments: tile nt = w + 8k, K-step t")
    for k in range(3):
        for t in range(3):
            a.e(f"ds_read_b64_tr_b16 {vr(WOA[k][t],2)}, v{AD_TR} offset:{L_WO+10240*t+256*k}")
    a.c("hop 1 gather: waves 0,1 (b = wave): lane l: s = l/16, chunk = l%16")
    a.e(f"s_cmp_lt_u32 s{S_W}, 2")
    a.e("s_cbranch_scc0 L_h1done")
    poll(a, opt, "h1", O, AD_H1, SX_H1, "0x1fff1fff", "0x1fff1fff", opt.hsleep)
    if opt.ts == 4: stamp(a, opt, 2)
    Ml, Mm = X, X + 1
    a.e(f"v_mov_b32_dpp v{Ml}, v{O} row_newbcast:12 row_mask:0xf bank_mask:0xf")
    a.e(f"v_mov_b32_dpp v{Mm}, v{O+1} row_newbcast:12 row_mask:0xf bank_mask:0xf")
    a.e(f"v_and_b32 v{Mm}, 0xffffff00, v{Mm}")
    Mx = X + 2
    a.e(f"v_mov_b32 v{Mx}, v{Mm}")
    allred_rows(a, "v_max_f32", Mx, X + 3)
    a.e(f"v_sub_f32 v{Mm}, v{Mm}, v{Mx}")
    a.e(f"v_exp_f32 v{Mm}, v{Mm}")
    a.e("s_nop 0")
    a.e(f"v_mul_f32 v{Ml}, v{Mm}, v{Ml}")
    for r in range(4):
        a.e(f"v_mul_f32 v{O+r}, v{Mm}, v{O+r}")
    a.e(f"v_mov_b32 v{X+3}, v{Ml}")
    a.nop(1)
    a.e(f"v_permlane32_swap_b32 v{O}, v{O+2}")
    a.e(f"v_permlane32_swap_b32 v{O+1}, v{O+3}")
    a.e(f"v_permlane16_swap_b32 v{Ml}, v{X+3}")
    a.e(f"v_add_f32 v{O}, v{O}, v{O+2}")
    a.e(f"v_add_f32 v{O+1}, v{O+1}, v{O+3}")
    a.e(f"v_add_f32 v{Ml}, v{Ml}, v{X+3}")
    a.e(f"v_mov_b32 v{X+3}, v{Ml}")
    a.nop(1)
    a.e(f"v_permlane16_swap_b32 v{O}, v{O+1}")
    a.e(f"v_permlane32_swap_b32 v{Ml}, v{X+3}")
    a.e(f"v_add_f32 v{O}, v{O}, v{O+1}")
    a.e(f"v_add_f32 v{Ml}, v{Ml}, v{X+3}")
    a.e(f"v_rcp_f32 v{Ml}, v{Ml}")
    a.e("s_nop 0")
    a.e(f"v_mul_f32 v{O}, v{O}, v{Ml}")
    a.e(f"v_cvt_pk_bf16_f32 v{O}, v{O}, v{O}")
    a.e(f"s_mov_b32 exec_lo, 0x0fff0fff")
    a.e(f"s_mov_b32 exec_hi, 0x0fff0fff")
    a.e(f"ds_write_b16 v{AD_OBW}, v{O} offset:{L_OBF}")
    a.e("s_mov_b64 exec, -1")
    a.label("L_h1done")
    a.e("s_waitcnt lgkmcnt(0)")
    a.e("s_barrier")
    a.c("out-proj MFMA")
    B = [slot(4) + 2*t for t in range(3)]
    for t in range(3):
        a.e(f"ds_read_b64 {vr(B[t],2)}, v{AD_B} offset:{L_OBF+32*t}")
    D = [V_ACC + 4*k for k in range(3)]
    for t in range(3):
        a.e(f"s_waitcnt lgkmcnt({2-t})")
        for k in range(3):
            src = "0" if t == 0 else vr(D[k], 4)
            a.e(f"v_mfma_f32_16x16x16_bf16 {vr(D[k],4)}, {vr(WOA[k][t],2)}, {vr(B[t],2)}, {src}")
    a.e(f"s_mov_b32 exec_lo, 0x00030003")
    a.e(f"s_mov_b32 exec_hi, 0x00030003")
    a.nop(4)
    for k in range(3):
        for r in range(4):
            a.e(f"v_bfi_b32 v{D[k]+r}, v{V_FF}, v{V_TAG8}, v{D[k]+r}")
        if k == 2:
            a.e(f"s_cmp_lt_u32 s{S_W}, 4")
            a.e("s_cbranch_scc0 L_no3")
        a.e(f"buffer_store_dwordx4 {vr(D[k],4)}, v{AD_ST}, {sr(R_WS,4)}, s{SX_ST+k} offen sc1")
    a.label("L_no3")
    a.e("s_mov_b64 exec, -1")
    if opt.ts == 4: stamp(a, opt, 3)
    a.c("hop 2: all 8 waves of WGs rec < 80; wave k sums producers 16k..16k+15")
    a.e(f"s_cmp_lt_u32 s{S_REC}, 80")
    a.e("s_cbranch_scc0 L_fin")
    P = slot(5)
    poll(a, opt, "h2", P, AD_L16, SX_H2, "-1", "-1", opt.h2sleep)
    reduce4_rows(a, P)
    a.nop(2)
    a.e(f"v_add_f32_dpp v{P}, v{P}, v{P} row_ror:8 row_mask:0xf bank_mask:0xf")
    a.nop(2)
    a.e(f"v_add_f32_dpp v{P}, v{P}, v{P} row_ror:4 row_mask:0xf bank_mask:0xf")
    a.e(f"s_mov_b32 exec_lo, 0x000f000f")
    a.e(f"s_mov_b32 exec_hi, 0x000f000f")
    a.e(f"ds_write_b32 v{AD_FW}, v{P} offset:{L_FIN}")
    a.e("s_mov_b64 exec, -1")
    a.e("s_waitcnt lgkmcnt(0)")
    a.e("s_barrier")
    a.e(f"s_cmp_eq_u32 s{S_W}, 0")
    a.e("s_cbranch_scc0 L_fin")
    a.e(f"v_lshlrev_b32 v{V_T0}, 2, v{V_LANE}")
    F = slot(6)
    for k in range(4):
        a.e(f"ds_read2_b32 {vr(F+2*k,2)}, v{V_T0} offset0:{(L_FIN % 1024)//4 + 32*k} offset1:{(L_FIN % 1024)//4 + 32*k + 16}" if False else
            f"ds_read2_b32 {vr(F+2*k,2)}, v{V_T2} offset0:{32*k} offset1:{32*k+16}")
    a.lines.insert(len(a.lines)-4, f"    v_add_u32 v{V_T2}, {L_FIN}, v{V_T0}")
    a.e(f"v_lshlrev_b32 v{V_T1}, 1, v{V_LANE}")
    a.e("s_waitcnt lgkmcnt(0)")
    a.e(f"v_add_f32 v{F}, v{F}, v{F+1}")
    a.e(f"v_add_f32 v{F+2}, v{F+2}, v{F+3}")
    a.e(f"v_add_f32 v{F+4}, v{F+4}, v{F+5}")
    a.e(f"v_add_f32 v{F+6}, v{F+6}, v{F+7}")
    a.e(f"v_add_f32 v{F}, v{F}, v{F+2}")
    a.e(f"v_add_f32 v{F+4}, v{F+4}, v{F+6}")
    a.e(f"v_add_f32 v{F}, v{F}, v{F+4}")
    a.e(f"v_cvt_pk_bf16_f32 v{F}, v{F}, v{F}")
    a.e("s_mov_b64 exec, 0xffff")
    a.e(f"buffer_store_short v{F}, v{V_T1}, {sr(R_OUT,4)}, s{SX_OUT} offen")
    a.e(f"s_cmp_eq_u32 s{S_REC}, 0")
    a.e("s_cbranch_scc0 L_fin2")
    a.e(f"v_mov_b32 v{V_T0}, s{S_TAG}")
    a.e("s_mov_b64 exec, 1")
    a.e(f"buffer_store_dword v{V_T0}, v{AD_ZERO}, {sr(R_WS,4)}, {WS_EPOCH} offen sc1")
    a.label("L_fin2")
    a.e("s_mov_b64 exec, -1")
    a.label("L_fin")

def finish(a):
    a.label("L_end")
    a.e("s_endpgm")
    a.lines.append('.section .rodata,"a"')
    a.lines.append(".p2align 6")
    a.lines.append(f".amdhsa_kernel {KNAME}")
    for l in ["next_free_vgpr 256", "next_free_sgpr 102", "accum_offset 256", "group_segment_fixed_size 0",
              "kernarg_size 64", "user_sgpr_count 2", "user_sgpr_kernarg_segment_ptr 1", "system_sgpr_workgroup_id_x 1"]:
        a.lines.append("  .amdhsa_" + l)
    a.lines.append(".end_amdhsa_kernel")
    return "\n".join(a.lines) + "\n"

def parser():
    p = argparse.ArgumentParser()
    p.add_argument("--nt", type=int, default=1)
    p.add_argument("--ts", type=int, default=0)
    p.add_argument("--grid", type=int, default=256)
    p.add_argument("--qdelay", type=int, default=32)
    p.add_argument("--qsleep", type=int, default=8)
    p.add_argument("--hsleep", type=int, default=1)
    p.add_argument("--h2sleep", type=int, default=1)
    p.add_argument("--fine", type=int, default=5)
    p.add_argument("--tgroups", type=int, default=9)
    p.add_argument("--map", type=int, default=2)
    p.add_argument("--ajoin", type=int, default=1)
    p.add_argument("--nsa", type=int, default=16)
    p.add_argument("--nsb", type=int, default=8)
    p.add_argument("--cstride", type=int, default=16640)
    p.add_argument("--noq", type=int, default=0)
    p.add_argument("--nowo", type=int, default=0)
    p.add_argument("--notail", type=int, default=0)
    p.add_argument("-o", default="k.s")
    return p

if __name__ == "__main__":
    opt = parser().parse_args()
    setcfg(opt.nsa, opt.nsb)
    a = gen(opt)
    open(opt.o, "w").write(finish(a))
    print("wrote", opt.o, len(a.lines), "lines")
```

```python
import sys, argparse, struct

KNAME = "standalone__sliding_block_cached__decode_kernel"

def f32bits(x):
    return struct.unpack("<I", struct.pack("<f", x))[0]

class A:
    def __init__(self):
        self.lines = []
        self.vm = []
    def e(self, s):
        self.lines.append("    " + s)
    def c(self, s):
        self.lines.append("    ; " + s)
    def label(self, n):
        self.lines.append(n + ":")
    def vmem(self, s, tag=None):
        self.e(s)
        self.vm.append(tag)
        assert len(self.vm) <= 63, ("too many outstanding", len(self.vm))
    def throttle(self, D, add=1):
        if D and len(self.vm) + add > D:
            n = D - add
            self.e(f"s_waitcnt vmcnt({n})")
            self.vm = self.vm[len(self.vm) - n:] if n > 0 else []
    def wait_vm(self, tag):
        if tag not in self.vm:
            return
        idx = max(i for i, t in enumerate(self.vm) if t == tag)
        n = len(self.vm) - 1 - idx
        self.e(f"s_waitcnt vmcnt({n})")
        self.vm = self.vm[idx + 1:]
    def nop(self, n):
        while n > 0:
            k = min(n, 16)
            self.e(f"s_nop {k-1}")
            n -= k

def vr(a, n=1):
    return f"v{a}" if n == 1 else f"v[{a}:{a+n-1}]"
def sr(a, n=1):
    return f"s{a}" if n == 1 else f"s[{a}:{a+n-1}]"

V_TID, V_LANE, V_OFFKV, V_OFFW = 0, 1, 2, 3
V_X = 4
V_TAG8 = 3
V_FF = 4
V_LDSP = 5
V_L = 6
V_MC = 7
V_OFFD = 8
V_T0, V_T1, V_T2 = 9, 10, 11
V_Q = 12
V_S = 24
V_ACC = 40
V_RING = 64

S_X, S_K, S_V, S_WQ, S_WO, S_OUT, S_DBG, S_WS = 4, 6, 8, 10, 12, 14, 16, 18
R_K, R_V, R_WQ, R_X, R_WO, R_WS, R_OUT = 20, 24, 28, 32, 36, 40, 44
S_EPOCH = 3
S_TAG = 48
S_RQ, S_CH = 49, 50
S_CNT = 51
S_GOFF = 52
S_WOFF = 68
S_H, S_I, S_B, S_W = 78, 79, 80, 81
S_T = 82
S_REC = 94
S_SPIN = 95
TS_PAIRS = [96, 98, 100, 90, 92]

L_WO = 0
L_PART = 32768
L_QBF = 40960
L_OBF = 41472
L_M = 41984
L_FLAG = 42048
L_SFLAG = 42064
L_TAG = 42112
L_SIZE = 43008

WS_EPOCH = 0
WS_H1 = 0x100000
WS_H2 = 0x200000
WS_QX = 0x300000
WS_TS = 0x400000
WS_CNT = 0x600000
CNT_STRIDE = 16640
NSA = 16
NSB = 8
def setcfg(nsa, nsb, nsmall=32):
    global NSA, NSB, STAT_ROWS, POOL_ROW0, NTASK
    NSA, NSB = nsa, nsb
    STAT_ROWS = 3*8*NSA + 5*8*NSB
    POOL_ROW0 = 4*STAT_ROWS
    global NT1, NT2
    pool = 4096 - POOL_ROW0
    NT2 = nsmall
    assert (pool - 8*NT2) % 16 == 0
    NT1 = (pool - 8*NT2)//16
    NTASK = NT1 + NT2
setcfg(16, 8)
WS_SIZE = 1610612736

AD_FIN, AD_L16, AD_H1, AD_OBW, AD_B, AD_ST, AD_TR, AD_ZERO, AD_FW = [V_RING + 12*15 + k for k in range(9)]
SX_REC, SX_H1, SX_ST, SX_H2, SX_OUT, SX_NEED, SX_M = 52, 53, 54, 57, 58, 60, 62
L_FIN = L_PART
LOG2E = f32bits(1.4426950408889634)
SCALE = f32bits(192 ** -0.5)
SPINMAX = 1 << 17

def slot(g):
    return V_RING + 12 * g

def reduce24(a, acc):
    a.nop(3)
    for j in range(3):
        for e in range(4):
            a.e(f"v_permlane32_swap_b32 v{acc+8*j+e}, v{acc+8*j+e+4}")
    for j in range(3):
        for e in range(4):
            a.e(f"v_add_f32 v{acc+8*j+e}, v{acc+8*j+e}, v{acc+8*j+e+4}")
    a.nop(2)
    for j in range(3):
        for e in range(2):
            a.e(f"v_permlane16_swap_b32 v{acc+8*j+e}, v{acc+8*j+e+2}")
    for j in range(3):
        for e in range(2):
            a.e(f"v_add_f32 v{acc+8*j+e}, v{acc+8*j+e}, v{acc+8*j+e+2}")
    a.nop(2)
    for j in range(3):
        a.e(f"v_add_f32_dpp v{acc+8*j}, v{acc+8*j}, v{acc+8*j} row_ror:8 row_mask:0xf bank_mask:0x3")
    for j in range(3):
        a.e(f"v_add_f32_dpp v{acc+8*j}, v{acc+8*j+1}, v{acc+8*j+1} row_ror:8 row_mask:0xf bank_mask:0xc")

def allred_rows(a, op, v, t):
    a.e(f"v_mov_b32 v{t}, v{v}")
    a.nop(2)
    a.e(f"v_permlane16_swap_b32 v{v}, v{t}")
    a.e(f"{op} v{v}, v{v}, v{t}")
    a.e(f"v_mov_b32 v{t}, v{v}")
    a.nop(2)
    a.e(f"v_permlane32_swap_b32 v{v}, v{t}")
    a.e(f"{op} v{v}, v{v}, v{t}")

def allred_hi(a, op, v, t):
    a.nop(2)
    a.e(f"{op}_dpp v{v}, v{v}, v{v} row_ror:8 row_mask:0xf bank_mask:0xf")
    allred_rows(a, op, v, t)

def reduce4_rows(a, P):
    a.nop(2)
    a.e(f"v_permlane32_swap_b32 v{P}, v{P+2}")
    a.e(f"v_permlane32_swap_b32 v{P+1}, v{P+3}")
    a.e(f"v_add_f32 v{P}, v{P}, v{P+2}")
    a.e(f"v_add_f32 v{P+1}, v{P+1}, v{P+3}")
    a.nop(2)
    a.e(f"v_permlane16_swap_b32 v{P}, v{P+1}")
    a.e(f"v_add_f32 v{P}, v{P}, v{P+1}")

def stamp(a, opt, k):
    if opt.ts:
        p = TS_PAIRS[k]
        a.e(f"s_memrealtime s[{p}:{p+1}]")

def forms(a, src, odd, lo, hi):
    if not odd:
        a.e(f"v_and_b32 v{lo}, 0xffff, v{src}")
        a.e(f"v_lshlrev_b32 v{hi}, 16, v{src}")
    else:
        a.e(f"v_lshrrev_b32 v{lo}, 16, v{src}")
        a.e(f"v_and_b32 v{hi}, 0xffff0000, v{src}")

def pv(a, base, acc, lo, hi):
    for j in range(3):
        for i in range(4):
            w = base + 4*j + i
            a.e(f"v_dot2c_f32_bf16 v{acc+8*j+2*i}, v{w}, v{lo}")
            a.e(f"v_dot2c_f32_bf16 v{acc+8*j+2*i+1}, v{w}, v{hi}")

def tagcheck(a, P, t, dst):
    a.e(f"v_xor_b32 v{t}, v{P}, v{V_TAG8}")
    a.e(f"v_xor_b32 v{t+1}, v{P+1}, v{V_TAG8}")
    a.e(f"v_xor_b32 v{t+2}, v{P+2}, v{V_TAG8}")
    a.e(f"v_xor_b32 v{t+3}, v{P+3}, v{V_TAG8}")
    a.e(f"v_or3_b32 v{t}, v{t}, v{t+1}, v{t+2}")
    a.e(f"v_or_b32 v{t}, v{t}, v{t+3}")
    a.e(f"v_and_b32 v{t}, v{V_FF}, v{t}")
    a.e(f"v_cmp_ne_u32 {dst}, 0, v{t}")

def gen(opt):
    a = A()
    nt = " nt" if opt.nt else ""
    a.lines.append(f"; @launch grid=({opt.grid},1,1) block=(512,1,1) lds={L_SIZE}")
    a.lines.append('.amdgcn_target "amdgcn-amd-amdhsa--gfx950"')
    a.lines.append(".text")
    a.lines.append(f".globl {KNAME}")
    a.lines.append(".p2align 8")
    a.lines.append(f".type {KNAME},@function")
    a.label(KNAME)
    a.e("s_cmp_ge_u32 s2, 256")
    a.e("s_cbranch_scc1 L_end")
    a.e("s_load_dwordx16 s[4:19], s[0:1], 0")
    stamp(a, opt, 0)
    if opt.map == 1:
        a.e(f"s_lshr_b32 s{S_H}, s2, 3")
        a.e(f"s_and_b32 s{S_I}, s2, 7")
    elif opt.map == 3:
        a.e(f"s_lshr_b32 s{S_H}, s2, 3")
        a.e(f"s_and_b32 s{S_T}, s2, 7")
        a.e(f"s_lshr_b32 s{S_T+1}, s{S_T}, 2")
        a.e(f"s_xor_b32 s{S_T+1}, s{S_T+1}, s{S_T}")
        a.e(f"s_and_b32 s{S_T+1}, s{S_T+1}, 1")
        a.e(f"s_lshl_b32 s{S_T+1}, s{S_T+1}, 2")
        a.e(f"s_lshr_b32 s{S_T}, s{S_T}, 1")
        a.e(f"s_add_u32 s{S_I}, s{S_T}, s{S_T+1}")
    elif opt.map == 2:
        a.e(f"s_lshr_b32 s{S_H}, s2, 3")
        a.e(f"s_and_b32 s{S_T}, s2, 7")
        a.e(f"s_bcnt1_i32_b32 s{S_T+1}, s{S_T}")
        a.e(f"s_and_b32 s{S_T+1}, s{S_T+1}, 1")
        a.e(f"s_lshl_b32 s{S_T+1}, s{S_T+1}, 2")
        a.e(f"s_lshr_b32 s{S_T}, s{S_T}, 1")
        a.e(f"s_add_u32 s{S_I}, s{S_T}, s{S_T+1}")
    else:
        a.e(f"s_and_b32 s{S_T}, s2, 7")
        a.e(f"s_lshr_b32 s{S_T+1}, s2, 3")
        a.e(f"s_and_b32 s{S_T+2}, s{S_T+1}, 3")
        a.e(f"s_lshl_b32 s{S_T+2}, s{S_T+2}, 3")
        a.e(f"s_add_u32 s{S_H}, s{S_T}, s{S_T+2}")
        a.e(f"s_lshr_b32 s{S_I}, s{S_T+1}, 2")
    a.e(f"s_lshr_b32 s{S_B}, s{S_I}, 2")
    a.e(f"s_lshl_b32 s{S_REC}, s{S_H}, 3")
    a.e(f"s_add_u32 s{S_REC}, s{S_REC}, s{S_I}")
    a.e(f"s_lshr_b32 s{S_RQ}, s{S_I}, 1")
    a.e(f"s_and_b32 s{S_CH}, s{S_I}, 1")
    a.e(f"v_and_b32 v{V_LANE}, 63, v{V_TID}")
    a.e(f"v_lshrrev_b32 v{V_T0}, 6, v{V_TID}")
    a.e(f"v_lshrrev_b32 v{V_T1}, 3, v{V_LANE}")
    a.e(f"v_and_b32 v{V_T2}, 7, v{V_LANE}")
    a.e(f"v_readfirstlane_b32 s{S_W}, v{V_T0}")
    a.e(f"v_lshlrev_b32 v{V_T2}, 4, v{V_T2}")
    a.e(f"v_mul_u32_u24 v{V_OFFKV}, 384, v{V_T1}")
    a.e(f"v_add_u32 v{V_OFFKV}, v{V_OFFKV}, v{V_T2}")
    a.e(f"v_mul_u32_u24 v{V_OFFW}, {10*12288}, v{V_T1}")
    a.e(f"v_add_u32 v{V_OFFW}, v{V_OFFW}, v{V_T2}")
    a.e(f"v_mul_u32_u24 v{V_T0}, 20, v{V_T1}")
    a.e(f"v_mov_b32 v{V_T1}, 0")
    a.e(f"v_lshlrev_b32 v{V_T2}, 2, v{V_LANE}")
    a.e("s_mov_b64 exec, 0xff")
    a.e(f"ds_write_b32 v{V_T2}, v{V_T1} offset:{L_FLAG}")
    a.e("s_mov_b64 exec, -1")
    for g in range(16):
        a.e(f"s_mov_b32 s{S_GOFF+g}, {3072*g}")
    for g in range(10):
        a.e(f"s_mov_b32 s{S_WOFF+g}, {12288*g}")
    a.e(f"v_mov_b32 v{V_OFFD}, v{V_OFFKV}")
    a.e(f"s_sub_u32 s{S_T}, s{S_W}, 1")
    a.e(f"s_mul_i32 s{S_T}, s{S_T}, {8*NSA*384}")
    a.e(f"s_sub_u32 s{S_T+1}, s{S_W}, 3")
    a.e(f"s_max_i32 s{S_T+1}, s{S_T+1}, 0")
    a.e(f"s_mul_i32 s{S_T+1}, s{S_T+1}, {8*NSB*384}")
    a.e(f"s_add_u32 s{S_T+1}, s{S_T+1}, {3*8*NSA*384}")
    a.e(f"s_sub_u32 s{S_T+2}, s{S_W}, 1")
    a.e(f"s_cmp_lt_u32 s{S_T+2}, 3")
    a.e(f"s_cselect_b32 s{S_T}, s{S_T}, s{S_T+1}")
    a.e(f"s_and_b32 s{S_T+1}, s{S_I}, 3")
    a.e(f"s_mul_i32 s{S_T+1}, s{S_T+1}, {STAT_ROWS*384}")
    a.e(f"s_add_u32 s{S_T}, s{S_T}, s{S_T+1}")
    a.e(f"v_add_u32 v{V_OFFKV}, s{S_T}, v{V_OFFKV}")
    a.e(f"s_mul_i32 s{S_T+2}, s{S_I}, 160")
    a.e(f"v_add_u32 v{V_T0}, s{S_T+2}, v{V_T0}")
    a.e(f"s_lshl_b32 s{S_T}, s{S_B}, 5")
    a.e(f"s_add_u32 s{S_T}, s{S_T}, s{S_H}")
    a.e(f"s_mul_i32 s{S_CNT}, s{S_T}, {opt.cstride}")
    a.e(f"s_add_u32 s{S_CNT}, s{S_CNT}, {WS_CNT}")
    a.e(f"s_mul_i32 s{S_T}, s{S_T}, 6291456")
    a.e(f"s_add_u32 s{S_T}, s{S_T}, 4718592")
    a.e(f"s_mul_i32 s{S_T+1}, s{S_H}, 384")
    a.e(f"s_mul_i32 s{S_T+3}, s{S_I}, {80*12288}")
    a.e(f"s_add_u32 s{S_T+1}, s{S_T+1}, s{S_T+3}")
    a.e(f"s_mul_i32 s{S_T+2}, s{S_H}, {192*1280}")
    a.e(f"s_mul_i32 s{S_T+3}, s{S_RQ}, {48*1280}")
    a.e(f"s_add_u32 s{S_T+2}, s{S_T+2}, s{S_T+3}")
    a.e(f"s_mul_i32 s{S_T+3}, s{S_CH}, 640")
    a.e(f"s_add_u32 s{S_T+2}, s{S_T+2}, s{S_T+3}")
    a.e("s_waitcnt lgkmcnt(0)")
    a.e("s_barrier")
    def srd(R, P, off_s, nbytes):
        if off_s is None:
            a.e(f"s_mov_b32 s{R}, s{P}")
            a.e(f"s_mov_b32 s{R+1}, s{P+1}")
        else:
            a.e(f"s_add_u32 s{R}, s{P}, s{off_s}")
            a.e(f"s_addc_u32 s{R+1}, s{P+1}, 0")
        a.e(f"s_mov_b32 s{R+2}, {nbytes}")
        a.e(f"s_mov_b32 s{R+3}, 0x00020000")
    srd(R_K, S_K, S_T, 4096*384)
    srd(R_WQ, S_WQ, S_T+1, 79*12288+384)
    srd(R_X, S_X, None, 2560)
    srd(R_V, S_V, S_T, 4096*384)
    srd(R_WO, S_WO, S_T+2, 47*1280+640)
    srd(R_WS, S_WS, None, WS_SIZE)
    srd(R_OUT, S_OUT, None, 2560)

    def load_grp(kind, g, sl, thr=None):
        R, voff, soff, fl = {"K": (R_K, V_OFFKV, S_GOFF + g, nt), "V": (R_V, V_OFFKV, S_GOFF + g, nt),
                             "W": (R_WQ, V_OFFW, S_WOFF + g, nt)}[kind]
        for j in range(3):
            if thr is None: thr = (kind == "K" and g < opt.tgroups)
            if opt.fine and thr: a.throttle(opt.fine, 1)
            a.vmem(f"buffer_load_dwordx4 {vr(slot(sl)+4*j,4)}, v{voff}, {sr(R,4)}, s{soff} offen offset:{128*j}{fl}", (kind, g))

    a.e(f"s_cmp_eq_u32 s{S_W}, 0")
    a.e("s_cbranch_scc0 L_main")
    a.c("wave 0: q projection partial + exchange")
    if opt.noq:
        a.e(f"s_and_b32 s{S_T+4}, s{S_I}, 3")
        a.e(f"s_cmp_eq_u32 s{S_T+4}, 0")
        a.e("s_cbranch_scc0 L_noinit0")
        a.e(f"v_mov_b32 v{V_T1}, 0")
        a.e("s_mov_b64 exec, 1")
        a.e(f"buffer_store_dword v{V_T1}, v{V_T1}, {sr(R_WS,4)}, s{S_CNT} offen sc1")
        a.e("s_mov_b64 exec, -1")
        a.e("s_waitcnt vmcnt(0)")
        a.label("L_noinit0")
        a.e(f"s_sleep {opt.noq}")
        a.e(f"v_mov_b32 v{V_T0}, 0")
        a.e(f"v_mov_b32 v{V_T2}, 1")
        a.e("s_mov_b64 exec, 1")
        a.e(f"ds_write_b32 v{V_T0}, v{V_T2} offset:{L_FLAG}")
        a.e("s_mov_b64 exec, -1")
        stamp(a, opt, 1)
        stamp(a, opt, 2)
        a.e("s_branch L_mainB")
    VE = slot(14)
    a.e(f"v_mov_b32 v{VE+1}, 0")
    a.vmem(f"buffer_load_dword v{VE}, v{VE+1}, {sr(R_WS,4)}, {WS_EPOCH} offen sc1", "x")
    X1 = slot(10)
    F1 = slot(10) + 6
    ACC1 = slot(11)
    a.vmem(f"buffer_load_dwordx4 {vr(slot(13),4)}, v{V_T0}, {sr(R_X,4)}, 0 offen", "x")
    X0 = slot(13)
    a.vmem(f"buffer_load_dword v{X0+4}, v{V_T0}, {sr(R_X,4)}, 0 offen offset:16", "x")
    a.vmem(f"buffer_load_dwordx4 {vr(X1,4)}, v{V_T0}, {sr(R_X,4)}, 0 offen offset:1280", "x")
    a.vmem(f"buffer_load_dword v{X1+4}, v{V_T0}, {sr(R_X,4)}, 0 offen offset:1296", "x")
    a.e(f"s_and_b32 s{S_T+4}, s{S_I}, 3")
    a.e(f"s_cmp_eq_u32 s{S_T+4}, 0")
    a.e("s_cbranch_scc0 L_noinit")
    a.e(f"v_mov_b32 v{V_T1}, 0")
    a.e("s_mov_b64 exec, 1")
    a.e(f"buffer_store_dword v{V_T1}, v{V_T1}, {sr(R_WS,4)}, s{S_CNT} offen sc1")
    a.e("s_mov_b64 exec, -1")
    a.label("L_noinit")
    for g in range(10):
        load_grp("W", g, g)
    for r in range(24):
        a.e(f"v_mov_b32 v{V_ACC+r}, 0")
        a.e(f"v_mov_b32 v{ACC1+r}, 0")
    for g in range(10):
        a.wait_vm(("W", g))
        forms(a, X0 + g//2, g % 2, V_T0, V_T1)
        forms(a, X1 + g//2, g % 2, F1, F1+1)
        pv(a, slot(g), V_ACC, V_T0, V_T1)
        pv(a, slot(g), ACC1, F1, F1+1)
    reduce24(a, V_ACC)
    reduce24(a, ACC1)
    a.e(f"v_readfirstlane_b32 s{S_EPOCH}, v{VE}")
    a.nop(4)
    a.e(f"s_add_u32 s{S_TAG}, s{S_EPOCH}, 1")
    G0, G1 = V_Q, V_Q + 4
    for j in range(3):
        a.e(f"v_mov_b32 v{G0+j}, v{V_ACC+8*j}")
        a.e(f"v_mov_b32 v{G1+j}, v{ACC1+8*j}")
    a.e(f"v_mov_b32 v{G0+3}, s{S_TAG}")
    a.e(f"v_mov_b32 v{G1+3}, s{S_TAG}")
    a.e(f"v_lshlrev_b32 v{V_T1}, 4, v{V_LANE}")
    a.e(f"s_lshl_b32 s{S_T}, s{S_H}, 14")
    a.e(f"s_add_u32 s{S_T}, s{S_T}, {WS_QX}")
    a.e(f"s_lshl_b32 s{S_T+1}, s{S_I}, 10")
    a.e(f"s_add_u32 s{S_T+1}, s{S_T+1}, s{S_T}")
    a.e(f"s_add_u32 s{S_T+2}, s{S_T+1}, 8192")
    a.e(f"buffer_store_dwordx4 {vr(G0,4)}, v{V_T1}, {sr(R_WS,4)}, s{S_T+1} offen sc1")
    a.e(f"buffer_store_dwordx4 {vr(G1,4)}, v{V_T1}, {sr(R_WS,4)}, s{S_T+2} offen sc1")
    if opt.ts in (1, 8): stamp(a, opt, 1)
    a.e(f"s_lshl_b32 s{S_T+1}, s{S_B}, 13")
    a.e(f"s_add_u32 s{S_T}, s{S_T}, s{S_T+1}")
    a.e(f"s_add_u32 s{S_T+1}, s{S_T}, 4096")
    GA = slot(0)
    QM = S_GOFF
    QM = S_WOFF
    qmask = [68, 70, 72, 74, 76, 84, 86, 88]
    for i in range(8):
        a.e(f"s_mov_b64 s[{qmask[i]}:{qmask[i]+1}], -1")
    a.e(f"s_mov_b32 s{S_SPIN}, 0")
    if opt.qdelay: a.e(f"s_sleep {opt.qdelay}")
    a.label("L_qpoll")
    for i in range(8):
        a.e(f"s_mov_b64 exec, s[{qmask[i]}:{qmask[i]+1}]")
        a.e(f"s_cbranch_execz L_qs{i}")
        a.e(f"buffer_load_dwordx4 {vr(GA+4*i,4)}, v{V_T1}, {sr(R_WS,4)}, s{S_T + (i//4)} offen offset:{1024*(i%4)} sc1")
        a.label(f"L_qs{i}")
    a.e("s_mov_b64 exec, -1")
    a.e("s_waitcnt vmcnt(0)")
    for i in range(8):
        a.e(f"v_cmp_ne_u32 s[{qmask[i]}:{qmask[i]+1}], s{S_TAG}, v{GA+4*i+3}")
    a.nop(5)
    for i in range(8):
        group4(a, qmask[i], "vcc")
    a.e(f"s_or_b64 vcc, s[{qmask[0]}:{qmask[0]+1}], s[{qmask[1]}:{qmask[1]+1}]")
    for i in range(2, 8):
        a.e(f"s_or_b64 vcc, vcc, s[{qmask[i]}:{qmask[i]+1}]")
    a.e("s_cbranch_scc0 L_qok")
    a.e(f"s_add_u32 s{S_SPIN}, s{S_SPIN}, 1")
    a.e(f"s_cmp_gt_u32 s{S_SPIN}, {SPINMAX}")
    a.e("s_cbranch_scc1 L_qok")
    if opt.qsleep: a.e(f"s_sleep {opt.qsleep}")
    a.e("s_branch L_qpoll")
    a.label("L_qok")
    if opt.ts in (1, 8): stamp(a, opt, 2)
    for j in range(3):
        a.e(f"v_add_f32 v{GA+j}, v{GA+j}, v{GA+4+j}")
        a.e(f"v_add_f32 v{GA+8+j}, v{GA+8+j}, v{GA+12+j}")
        a.e(f"v_add_f32 v{GA+16+j}, v{GA+16+j}, v{GA+20+j}")
        a.e(f"v_add_f32 v{GA+24+j}, v{GA+24+j}, v{GA+28+j}")
    for j in range(3):
        a.e(f"v_add_f32 v{GA+j}, v{GA+j}, v{GA+8+j}")
        a.e(f"v_add_f32 v{GA+16+j}, v{GA+16+j}, v{GA+24+j}")
    for j in range(3):
        a.e(f"v_add_f32 v{GA+j}, v{GA+j}, v{GA+16+j}")
    for j in range(3):
        a.e(f"v_cvt_pk_bf16_f32 v{GA+j}, v{GA+j}, v{GA+j}")
    a.e(f"v_and_b32 v{V_T0}, 7, v{V_LANE}")
    a.e(f"v_lshlrev_b32 v{V_T0}, 4, v{V_T0}")
    a.e(f"v_lshrrev_b32 v{V_T2}, 3, v{V_LANE}")
    a.e(f"v_lshl_add_u32 v{V_T0}, v{V_T2}, 1, v{V_T0}")
    for j in range(3):
        a.e(f"ds_write_b16 v{V_T0}, v{GA+j} offset:{L_QBF+128*j}")
    a.e(f"v_mov_b32 v{V_T0}, 0")
    a.e(f"v_mov_b32 v{V_T1}, s{S_TAG}")
    a.e(f"v_mov_b32 v{V_T2}, 1")
    a.e("s_mov_b64 exec, 1")
    a.e(f"ds_write_b32 v{V_T0}, v{V_T1} offset:{L_TAG}")
    a.e("s_waitcnt lgkmcnt(0)")
    a.e(f"ds_write_b32 v{V_T0}, v{V_T2} offset:{L_FLAG}")
    a.e("s_mov_b64 exec, -1")
    a.vm = []
    def pre_q(NS, sfx, dyn=False):
        for g in range(NS):
            load_grp("K", g, g)
        if dyn:
            for g in range(NS - 4):
                load_grp("V", g, NS + g, thr=(NS + g < opt.tgroups))
        a.c("wo slice LDS-DMA: idx = tid + 512k ; row = idx/40 ; voff = 16*idx + 640*row")
        for k in range(4):
            t = V_ACC + 2*k
            a.e(f"v_add_u32 v{t}, {512*k}, v{V_TID}")
            a.e(f"v_mul_u32_u24 v{t+1}, 52429, v{t}")
            a.e(f"v_lshrrev_b32 v{t+1}, 21, v{t+1}")
            a.e(f"v_mul_u32_u24 v{t+1}, 640, v{t+1}")
            a.e(f"v_lshl_add_u32 v{t}, v{t}, 4, v{t+1}")
        a.e(f"s_lshl_b32 s{S_T+6}, s{S_W}, 10")
        for k in range(4):
            t = V_ACC + 2*k
            a.e(f"s_add_u32 m0, s{S_T+6}, {L_WO + 8192*k}")
            a.e("s_nop 0")
            if not opt.nowo: a.vmem(f"buffer_load_dwordx4 v{t}, {sr(R_WO,4)}, 0 offen{nt} lds", "wo")
        a.e(f"v_and_b32 v{V_T0}, 7, v{V_LANE}")
        a.e(f"v_lshlrev_b32 v{V_T1}, 5, v{V_T0}")
        a.e(f"v_lshrrev_b32 v{V_T2}, 3, v{V_LANE}")
        a.e(f"v_lshl_add_u32 v{V_T1}, v{V_T2}, 2, v{V_T1}")
        a.e(f"s_lshl_b32 s{S_T}, s{S_W}, 10")
        a.e(f"v_add_u32 v{V_LDSP}, s{S_T}, v{V_T1}")
        for g in range(NS):
            a.e(f"v_mov_b32 v{V_S+g}, 0")
        if opt.ts in (1, 8):
            a.e(f"s_cmp_eq_u32 s{S_W}, 0")
            a.e(f"s_cbranch_scc1 L_nost0{sfx}")
            stamp(a, opt, 1)
            a.label(f"L_nost0{sfx}")
        a.e(f"v_mov_b32 v{V_T2}, 0")
        a.e(f"s_mov_b32 s{S_SPIN}, 0")
        a.label(f"L_qwait{sfx}")
        a.e(f"ds_read_b32 v{V_T1}, v{V_T2} offset:{L_FLAG}")
        a.e("s_waitcnt lgkmcnt(0)")
        a.e(f"v_cmp_ne_u32 vcc, 1, v{V_T1}")
        a.nop(5)
        a.e("s_cmp_eq_u64 vcc, 0")
        a.e(f"s_cbranch_scc1 L_qready{sfx}")
        a.e(f"s_add_u32 s{S_SPIN}, s{S_SPIN}, 1")
        a.e(f"s_cmp_gt_u32 s{S_SPIN}, {SPINMAX*16}")
        a.e(f"s_cbranch_scc1 L_qready{sfx}")
        a.e("s_sleep 4")
        a.e(f"s_branch L_qwait{sfx}")
        a.label(f"L_qready{sfx}")
        a.e(f"v_lshlrev_b32 v{V_T0}, 4, v{V_T0}")
        for j in range(3):
            a.e(f"ds_read_b128 {vr(V_Q+4*j,4)}, v{V_T0} offset:{L_QBF+128*j}")
        a.e(f"ds_read_b32 v{V_TAG8}, v{V_T2} offset:{L_TAG}")
        a.e(f"v_mov_b32 v{V_FF}, 0xff")
        a.e("s_waitcnt lgkmcnt(0)")
        a.e(f"v_readfirstlane_b32 s{S_TAG}, v{V_TAG8}")
        a.e(f"v_and_b32 v{V_TAG8}, 0xff, v{V_TAG8}")
        if dyn:
            atomic()
            for g in range(NS - 4, NS):
                load_grp("V", g, NS + g)
            a.e(f"s_lshl_b32 s{S_T}, s{S_W}, 2")
            a.e(f"v_mov_b32 v{V_T1}, s{S_T}")
            a.e(f"v_mov_b32 v{V_T2}, 1")
            a.e("s_mov_b64 exec, 1")
            a.e(f"ds_write_b32 v{V_T1}, v{V_T2} offset:{L_SFLAG-16}")
            a.e("s_mov_b64 exec, -1")
        a.e("s_waitcnt lgkmcnt(0)")
        if opt.ts in (1, 8):
            a.e(f"s_cmp_eq_u32 s{S_W}, 0")
            a.e(f"s_cbranch_scc1 L_nost{sfx}")
            stamp(a, opt, 2)
            a.label(f"L_nost{sfx}")

    V_IDX = V_T2 + 0
    V_IDX = V_S + 15
    def atomic():
        a.e(f"v_mov_b32 v{V_IDX}, 1")
        a.e(f"v_mov_b32 v{V_IDX-1}, 0")
        a.e("s_mov_b64 exec, 1")
        a.vmem(f"buffer_atomic_add v{V_IDX}, v{V_IDX-1}, {sr(R_WS,4)}, s{S_CNT} offen sc0 sc1", "atom")
        a.e("s_mov_b64 exec, -1")

    def k_phase(NS, dyn):
        a.c("K phase")
        for g in range(NS):
            a.wait_vm(("K", g))
            for j in range(3):
                for i in range(4):
                    a.e(f"v_dot2c_f32_bf16 v{V_S+g}, v{slot(g)+4*j+i}, v{V_Q+4*j+i}")
            if not dyn:
                load_grp("V", g, g)

    def round_scores(regs, T):
        n = len(regs) // 2
        for k in range(n):
            a.e(f"v_cvt_pk_bf16_f32 v{T+k}, v{regs[2*k]}, v{regs[2*k+1]}")
        for k in range(n):
            a.e(f"v_lshlrev_b32 v{regs[2*k]}, 16, v{T+k}")
            a.e(f"v_and_b32 v{regs[2*k+1]}, 0xffff0000, v{T+k}")
        for r in regs:
            a.e(f"v_mul_f32 v{r}, 0x{SCALE:08x}, v{r}")
        for k in range(n):
            a.e(f"v_cvt_pk_bf16_f32 v{T+k}, v{regs[2*k]}, v{regs[2*k+1]}")
        for k in range(n):
            a.e(f"v_lshlrev_b32 v{regs[2*k]}, 16, v{T+k}")
            a.e(f"v_and_b32 v{regs[2*k+1]}, 0xffff0000, v{T+k}")

    def finish_l():
        allred_hi(a, "v_add_f32", V_L, V_T0)
        a.e(f"v_mul_f32 v{V_T2}, 0x{LOG2E:08x}, v{V_MC}")
        a.e(f"s_lshl_b32 s{S_T}, s{S_W}, 10")
        a.e(f"v_mov_b32 v{V_T0}, s{S_T}")
        a.e(f"s_lshl_b32 s{S_T}, s{S_W}, 2")
        a.e(f"v_mov_b32 v{V_T1}, s{S_T}")
        a.e("s_mov_b64 exec, 1")
        a.e(f"ds_write_b32 v{V_T0}, v{V_L} offset:{L_PART+768}")
        a.e(f"ds_write_b32 v{V_T1}, v{V_T2} offset:{L_M}")
        a.e("s_mov_b64 exec, -1")

    def tail_prep():
        c16, g16 = V_T0, V_T1
        a.e(f"v_and_b32 v{c16}, 15, v{V_LANE}")
        a.e(f"v_lshrrev_b32 v{g16}, 4, v{V_LANE}")
        a.e(f"v_mul_u32_u24 v{AD_FIN}, 192, v{g16}")
        a.e(f"v_lshl_add_u32 v{AD_FIN}, v{c16}, 4, v{AD_FIN}")
        a.e(f"v_mov_b32 v{V_T2}, 768")
        a.e(f"v_cmp_gt_u32 vcc, 12, v{c16}")
        a.e(f"v_lshlrev_b32 v{AD_L16}, 4, v{V_LANE}")
        a.e(f"v_lshlrev_b32 v{AD_H1}, 10, v{g16}")
        a.e(f"v_cndmask_b32 v{AD_FIN}, v{V_T2}, v{AD_FIN}, vcc")
        a.e(f"v_lshl_add_u32 v{AD_H1}, v{c16}, 4, v{AD_H1}")
        a.e(f"v_lshlrev_b32 v{AD_OBW}, 3, v{c16}")
        a.e(f"v_lshl_add_u32 v{AD_OBW}, v{g16}, 1, v{AD_OBW}")
        a.e(f"s_lshl_b32 s{S_T}, s{S_W}, 7")
        a.e(f"v_add_u32 v{AD_OBW}, s{S_T}, v{AD_OBW}")
        a.e(f"v_and_b32 v{V_T2}, 1, v{V_LANE}")
        a.e(f"v_lshlrev_b32 v{AD_B}, 7, v{V_T2}")
        a.e(f"v_lshl_add_u32 v{AD_B}, v{g16}, 3, v{AD_B}")
        a.e(f"v_mul_u32_u24 v{AD_ST}, {40*8192}, v{V_T2}")
        a.e(f"v_lshl_add_u32 v{AD_ST}, v{g16}, 4, v{AD_ST}")
        a.e(f"v_lshlrev_b32 v{AD_TR}, 2, v{g16}")
        a.e(f"v_bfe_u32 v{V_T2}, v{V_LANE}, 2, 2")
        a.e(f"v_add_u32 v{AD_TR}, v{AD_TR}, v{V_T2}")
        a.e(f"v_mul_u32_u24 v{AD_TR}, 640, v{AD_TR}")
        a.e(f"v_and_b32 v{V_T2}, 3, v{V_LANE}")
        a.e(f"v_lshl_add_u32 v{AD_TR}, v{V_T2}, 3, v{AD_TR}")
        a.e(f"s_lshl_b32 s{S_T}, s{S_W}, 5")
        a.e(f"v_add_u32 v{AD_TR}, s{S_T}, v{AD_TR}")
        a.e(f"v_mov_b32 v{AD_ZERO}, 0")
        a.e(f"v_lshlrev_b32 v{AD_FW}, 4, v{V_T2}")
        a.e(f"v_lshl_add_u32 v{AD_FW}, v{g16}, 2, v{AD_FW}")
        a.e(f"s_lshl_b32 s{S_T}, s{S_W}, 6")
        a.e(f"v_add_u32 v{AD_FW}, s{S_T}, v{AD_FW}")
        a.e(f"s_lshl_b32 s{SX_REC}, s{S_REC}, 10")
        a.e(f"s_add_u32 s{SX_REC}, s{SX_REC}, {WS_H1}")
        a.e(f"s_lshl_b32 s{SX_H1}, s{S_H}, 3")
        a.e(f"s_lshl_b32 s{S_T}, s{S_W}, 2")
        a.e(f"s_add_u32 s{SX_H1}, s{SX_H1}, s{S_T}")
        a.e(f"s_lshl_b32 s{SX_H1}, s{SX_H1}, 10")
        a.e(f"s_lshl_b32 s{S_T}, s{S_RQ}, 8")
        a.e(f"s_add_u32 s{SX_H1}, s{SX_H1}, s{S_T}")
        a.e(f"s_add_u32 s{SX_H1}, s{SX_H1}, {WS_H1}")
        a.e(f"s_mul_i32 s{SX_ST}, s{S_CH}, 20")
        a.e(f"s_add_u32 s{SX_ST}, s{SX_ST}, s{S_W}")
        a.e(f"s_lshl_b32 s{SX_ST}, s{SX_ST}, 13")
        a.e(f"s_lshl_b32 s{S_T}, s{S_H}, 2")
        a.e(f"s_add_u32 s{S_T}, s{S_T}, s{S_RQ}")
        a.e(f"s_lshl_b32 s{S_T}, s{S_T}, 6")
        a.e(f"s_add_u32 s{SX_ST}, s{SX_ST}, s{S_T}")
        a.e(f"s_add_u32 s{SX_ST}, s{SX_ST}, {WS_H2}")
        a.e(f"s_add_u32 s{SX_ST+1}, s{SX_ST}, 65536")
        a.e(f"s_add_u32 s{SX_ST+2}, s{SX_ST}, 131072")
        a.e(f"s_lshl_b32 s{SX_H2}, s{S_REC}, 13")
        a.e(f"s_lshl_b32 s{S_T}, s{S_W}, 10")
        a.e(f"s_add_u32 s{SX_H2}, s{SX_H2}, s{S_T}")
        a.e(f"s_add_u32 s{SX_H2}, s{SX_H2}, {WS_H2}")
        a.e(f"s_cmp_ge_u32 s{S_REC}, 40")
        a.e(f"s_cselect_b32 s{S_T}, 40, 0")
        a.e(f"s_cselect_b32 s{S_T+1}, 1280, 0")
        a.e(f"s_sub_u32 s{SX_OUT}, s{S_REC}, s{S_T}")
        a.e(f"s_lshl_b32 s{SX_OUT}, s{SX_OUT}, 5")
        a.e(f"s_add_u32 s{SX_OUT}, s{SX_OUT}, s{S_T+1}")

    def softmax(NS):
        a.c("softmax")
        a.nop(3)
        for ctl in ["quad_perm:[1,0,3,2]", "quad_perm:[2,3,0,1]", "row_half_mirror"]:
            for g in range(NS):
                a.e(f"v_add_f32_dpp v{V_S+g}, v{V_S+g}, v{V_S+g} {ctl} row_mask:0xf bank_mask:0xf")
        round_scores([V_S+g for g in range(NS)], V_ACC)
        M = V_MC
        a.e(f"v_max3_f32 v{M}, v{V_S}, v{V_S+1}, v{V_S+2}")
        k = 3
        while k + 1 < NS:
            a.e(f"v_max3_f32 v{M}, v{M}, v{V_S+k}, v{V_S+k+1}")
            k += 2
        if k < NS:
            a.e(f"v_max_f32 v{M}, v{M}, v{V_S+k}")
        allred_hi(a, "v_max_f32", M, V_T0)
        for g in range(NS):
            a.e(f"v_sub_f32 v{V_S+g}, v{V_S+g}, v{M}")
        for g in range(NS):
            a.e(f"v_mul_f32 v{V_S+g}, 0x{LOG2E:08x}, v{V_S+g}")
        for g in range(NS):
            a.e(f"v_exp_f32 v{V_S+g}, v{V_S+g}")
        a.e("s_nop 0")
        a.e(f"v_add_f32 v{V_L}, v{V_S}, v{V_S+1}")
        for g in range(2, NS):
            a.e(f"v_add_f32 v{V_L}, v{V_L}, v{V_S+g}")
        for k in range(NS//2):
            a.e(f"v_cvt_pk_bf16_f32 v{V_S+k}, v{V_S+2*k}, v{V_S+2*k+1}")
        for r in range(24):
            a.e(f"v_mov_b32 v{V_ACC+r}, 0")

    def v_phase(g0, g1, base=0):
        for g in range(g0, g1):
            a.wait_vm(("V", g))
            forms(a, V_S + g//2, g % 2, V_T0, V_T1)
            pv(a, slot(base + g), V_ACC, V_T0, V_T1)

    S_SOF = S_T + 2
    def issue_task(buf, big):
        if opt.ts: a.e("s_add_u32 s77, s77, 1")
        if big:
            a.e(f"s_mul_i32 s{S_SOF}, s{S_T}, 6144")
            a.e(f"s_add_u32 s{S_SOF}, s{S_SOF}, {POOL_ROW0*384}")
            a.e(f"s_add_u32 s{S_SOF+1}, s{S_SOF}, 3072")
        else:
            a.e(f"s_mul_i32 s{S_SOF}, s{S_T}, 3072")
            a.e(f"s_add_u32 s{S_SOF}, s{S_SOF}, {(POOL_ROW0 + 16*NT1 - 8*NT1)*384}")
        for (R, off) in [(R_K, 0), (R_V, 2)]:
            for gg in range(2 if big else 1):
                for j in range(3):
                    a.e(f"buffer_load_dwordx4 {vr(slot(buf+off+gg)+4*j,4)}, v{V_OFFD}, {sr(R,4)}, s{S_SOF+gg} offen offset:{128*j}{nt}")
        atomic()

    def read_idx(n_younger):
        a.e(f"s_waitcnt vmcnt({n_younger})")
        a.e(f"v_readfirstlane_b32 s{S_T}, v{V_IDX}")
        a.nop(4)

    def proc_k(buf, big, uid):
        s0, s1 = V_S, V_S + 1
        t = V_S + 2
        a.e(f"v_mov_b32 v{s0}, 0")
        a.e(f"v_mov_b32 v{s1}, 0")
        a.e(f"s_waitcnt vmcnt({7 if big else 4})")
        if big:
            for i in range(12):
                a.e(f"v_dot2c_f32_bf16 v{s0}, v{slot(buf)+i}, v{V_Q+i}")
                a.e(f"v_dot2c_f32_bf16 v{s1}, v{slot(buf+1)+i}, v{V_Q+i}")
            a.nop(3)
            for ctl in ["quad_perm:[1,0,3,2]", "quad_perm:[2,3,0,1]", "row_half_mirror"]:
                a.e(f"v_add_f32_dpp v{s0}, v{s0}, v{s0} {ctl} row_mask:0xf bank_mask:0xf")
                a.e(f"v_add_f32_dpp v{s1}, v{s1}, v{s1} {ctl} row_mask:0xf bank_mask:0xf")
                a.nop(1)
            round_scores([s0, s1], t)
            mn = t + 1
            a.e(f"v_max_f32 v{mn}, v{s0}, v{s1}")
        else:
            for i in range(6):
                a.e(f"v_dot2c_f32_bf16 v{s0}, v{slot(buf)+i}, v{V_Q+i}")
                a.e(f"v_dot2c_f32_bf16 v{s1}, v{slot(buf)+6+i}, v{V_Q+6+i}")
            a.nop(3)
            a.e(f"v_add_f32 v{s0}, v{s0}, v{s1}")
            for ctl in ["quad_perm:[1,0,3,2]", "quad_perm:[2,3,0,1]", "row_half_mirror"]:
                a.nop(2)
                a.e(f"v_add_f32_dpp v{s0}, v{s0}, v{s0} {ctl} row_mask:0xf bank_mask:0xf")
            a.e(f"v_cvt_pk_bf16_f32 v{t}, v{s0}, v{s0}")
            a.e(f"v_and_b32 v{s0}, 0xffff0000, v{t}")
            a.e(f"v_mul_f32 v{s0}, 0x{SCALE:08x}, v{s0}")
            a.e(f"v_cvt_pk_bf16_f32 v{t}, v{s0}, v{s0}")
            a.e(f"v_and_b32 v{s0}, 0xffff0000, v{t}")
            mn = t + 1
            a.e(f"v_mov_b32 v{mn}, v{s0}")
        allred_hi(a, "v_max_f32", mn, t + 2)
        a.e(f"v_cmp_gt_f32 vcc, v{mn}, v{V_MC}")
        a.nop(5)
        a.e("s_cmp_eq_u64 vcc, 0")
        a.e(f"s_cbranch_scc1 L_nors{uid}")
        a.e(f"v_sub_f32 v{t+2}, v{V_MC}, v{mn}")
        a.e(f"v_mul_f32 v{t+2}, 0x{LOG2E:08x}, v{t+2}")
        a.e(f"v_exp_f32 v{t+2}, v{t+2}")
        a.e(f"v_mov_b32 v{V_MC}, v{mn}")
        a.e(f"v_mul_f32 v{V_L}, v{t+2}, v{V_L}")
        for r in range(24):
            a.e(f"v_mul_f32 v{V_ACC+r}, v{t+2}, v{V_ACC+r}")
        a.label(f"L_nors{uid}")
        regs = [s0, s1] if big else [s0]
        for r in regs: a.e(f"v_sub_f32 v{r}, v{r}, v{V_MC}")
        for r in regs: a.e(f"v_mul_f32 v{r}, 0x{LOG2E:08x}, v{r}")
        for r in regs: a.e(f"v_exp_f32 v{r}, v{r}")
        a.e("s_nop 0")
        for r in regs: a.e(f"v_add_f32 v{V_L}, v{V_L}, v{r}")
        if big:
            a.e(f"v_cvt_pk_bf16_f32 v{t}, v{s0}, v{s1}")
            forms(a, t, 0, t+1, t+2)
            forms(a, t, 1, t+3, t+4)
        else:
            a.e(f"v_cvt_pk_bf16_f32 v{t}, v{s0}, v{s0}")
            forms(a, t, 0, t+1, t+2)

    def proc_v(buf, big):
        t = V_S + 2
        pv(a, slot(buf+2), V_ACC, t+1, t+2)
        if big: pv(a, slot(buf+3), V_ACC, t+3, t+4)

    def body(buf, other, big, name, oname):
        a.label(f"L_body{name}")
        proc_k(buf, big, name)
        read_idx(0)
        a.e(f"s_cmp_lt_u32 s{S_T}, {NT1}")
        a.e(f"s_cbranch_scc1 L_nb{name}")
        a.e(f"s_cmp_lt_u32 s{S_T}, {NT1+NT2}")
        a.e(f"s_cbranch_scc1 L_ns{name}")
        if opt.ts == 1: stamp(a, opt, 2)
        proc_v(buf, big)
        finish_l()
        a.e("s_branch L_vdone")
        a.label(f"L_nb{name}")
        issue_task(other, True)
        proc_v(buf, big)
        a.e(f"s_branch L_body{oname}B")
        a.label(f"L_ns{name}")
        issue_task(other, False)
        proc_v(buf, big)
        a.e(f"s_branch L_body{oname}S")

    def start_tasks(sfx):
        a.e(f"s_cmp_lt_u32 s{S_T}, {NT1}")
        a.e(f"s_cbranch_scc1 L_sb{sfx}")
        a.e(f"s_cmp_lt_u32 s{S_T}, {NT1+NT2}")
        a.e(f"s_cbranch_scc1 L_ss{sfx}")
        finish_l()
        a.e("s_branch L_vdone")
        a.label(f"L_sb{sfx}")
        issue_task(0, True)
        a.e("s_branch L_bodyXB")
        a.label(f"L_ss{sfx}")
        issue_task(0, False)
        a.e("s_branch L_bodyXS")

    a.e("s_branch L_mainB")
    a.label("L_main")
    a.e(f"s_cmp_lt_u32 s{S_W}, 4")
    a.e("s_cbranch_scc0 L_mainB")
    if opt.ts: a.e("s_mov_b32 s77, 0")
    pre_q(NSA, "A")
    k_phase(NSA, False)
    softmax(NSA)
    v_phase(0, NSA)
    tail_prep()
    a.e(f"s_lshl_b32 s{S_T}, s{S_W}, 2")
    a.e(f"v_mov_b32 v{V_T2}, s{S_T}")
    a.e(f"s_mov_b32 s{S_SPIN}, 0")
    a.label("L_pwait")
    a.e(f"ds_read_b32 v{V_T1}, v{V_T2} offset:{L_SFLAG}")
    a.e("s_waitcnt lgkmcnt(0)")
    a.e(f"v_cmp_ne_u32 vcc, 1, v{V_T1}")
    a.nop(5)
    a.e("s_cmp_eq_u64 vcc, 0")
    a.e(f"s_cbranch_scc1 L_pok")
    a.e(f"s_add_u32 s{S_SPIN}, s{S_SPIN}, 1")
    a.e(f"s_cmp_gt_u32 s{S_SPIN}, {SPINMAX*16}")
    a.e(f"s_cbranch_scc1 L_pok")
    a.e("s_sleep 8")
    a.e(f"s_branch L_pwait")
    a.label("L_pok")
    a.vm = []
    atomic()
    read_idx(0)
    start_tasks("A")
    a.label("L_mainB")
    a.vm = []
    if opt.ts: a.e("s_mov_b32 s77, 0")
    pre_q(NSB, "B", True)
    k_phase(NSB, True)
    softmax(NSB)
    a.wait_vm("atom")
    a.e(f"v_readfirstlane_b32 s{S_T}, v{V_IDX}")
    a.nop(4)
    vm_save = list(a.vm)
    a.e(f"s_cmp_lt_u32 s{S_T}, {NT1}")
    a.e("s_cbranch_scc0 L_rare")
    issue_task(0, True)
    a.vm = vm_save + ["t"]*13
    v_phase(0, NSB, NSB)
    tail_prep()
    a.e("s_branch L_bodyXB")
    a.label("L_rare")
    a.vm = vm_save
    a.e(f"s_mov_b32 s{S_SOF+2}, s{S_T}")
    v_phase(0, NSB, NSB)
    tail_prep()
    a.e(f"s_mov_b32 s{S_T}, s{S_SOF+2}")
    start_tasks("B")
    body(0, 4, True, "XB", "Y")
    body(4, 0, True, "YB", "X")
    body(0, 4, False, "XS", "Y")
    body(4, 0, False, "YS", "X")
    a.label("L_vdone")
    a.vm = []
    if opt.ts in (1, 8): stamp(a, opt, 3)
    if opt.ts == 4: stamp(a, opt, 1)
    if opt.ts == 9: stamp(a, opt, 3)
    reduce24(a, V_ACC)
    for j in range(3):
        a.e(f"ds_write_b32 v{V_LDSP}, v{V_ACC+8*j} offset:{L_PART+256*j}")
    a.e("s_waitcnt lgkmcnt(0)")
    a.e("s_barrier")
    a.e(f"s_cmp_eq_u32 s{S_W}, 0")
    a.e("s_cbranch_scc0 L_nopub")
    regs = [slot(8) + 4*k for k in range(8)]
    MW = V_S
    a.e(f"ds_read_b128 {vr(MW,4)}, v{AD_ZERO} offset:{L_M}")
    a.e(f"ds_read_b128 {vr(MW+4,4)}, v{AD_ZERO} offset:{L_M+16}")
    for w in range(8):
        a.e(f"ds_read_b128 {vr(regs[w],4)}, v{AD_FIN} offset:{L_PART+1024*w}")
    a.e("s_waitcnt lgkmcnt(8)")
    Mx = V_S + 8
    a.e(f"v_max3_f32 v{Mx}, v{MW}, v{MW+1}, v{MW+2}")
    a.e(f"v_max3_f32 v{Mx+1}, v{MW+3}, v{MW+4}, v{MW+5}")
    a.e(f"v_max3_f32 v{Mx}, v{Mx}, v{MW+6}, v{MW+7}")
    a.e(f"v_max_f32 v{Mx}, v{Mx}, v{Mx+1}")
    a.e(f"v_and_b32 v{Mx}, 0xffffff00, v{Mx}")
    for w in range(8):
        a.e(f"v_sub_f32 v{MW+w}, v{MW+w}, v{Mx}")
    for w in range(8):
        a.e(f"v_exp_f32 v{MW+w}, v{MW+w}")
    Y = V_S + 12
    Y2 = V_ACC
    for w in range(8):
        if w % 2 == 0: a.e(f"s_waitcnt lgkmcnt({6-w})")
        dst = Y if w % 2 == 0 else Y2
        for r in range(4):
            if w < 2:
                a.e(f"v_mul_f32 v{dst+r}, v{MW+w}, v{regs[w]+r}")
            else:
                a.e(f"v_fmac_f32 v{dst+r}, v{MW+w}, v{regs[w]+r}")
    for r in range(4):
        a.e(f"v_add_f32 v{Y+r}, v{Y+r}, v{Y2+r}")
    a.e("s_mov_b32 exec_lo, 0x10001000")
    a.e("s_mov_b32 exec_hi, 0x10001000")
    a.e(f"v_mov_b32 v{Y+1}, v{Mx}")
    a.e("s_mov_b64 exec, -1")
    for r in range(4):
        a.e(f"v_bfi_b32 v{Y+r}, v{V_FF}, v{V_TAG8}, v{Y+r}")
    a.e(f"buffer_store_dwordx4 {vr(Y,4)}, v{AD_L16}, {sr(R_WS,4)}, s{SX_REC} offen sc1")
    a.label("L_nopub")
    if not opt.notail: gen_tail(a, opt)
    if opt.ts:
        a.label("L_ts")
        if opt.ts in (1, 4, 8, 9): stamp(a, opt, 4)
        a.e("s_waitcnt lgkmcnt(0)")
        if opt.ts == 9:
            a.e(f"s_cmp_eq_u32 s{S_W}, 0")
            a.e("s_cbranch_scc0 L_end")
            a.e(f"s_cmp_lt_u32 s{S_REC}, 80")
            a.e("s_cbranch_scc0 L_end")
            a.e(f"s_mov_b32 s{R_X}, s{S_DBG}")
            a.e(f"s_mov_b32 s{R_X+1}, s{S_DBG+1}")
            a.e(f"s_mov_b32 s{R_X+2}, 256")
            a.e(f"s_mov_b32 s{R_X+3}, 0x00020000")
            a.e(f"v_mov_b32 v{V_T0}, 0")
            a.e("s_mov_b64 exec, 1")
            a.e(f"v_mov_b32 v{V_T1}, s{TS_PAIRS[0]}")
            a.e(f"v_not_b32 v{V_T1}, v{V_T1}")
            a.e(f"v_mov_b32 v{V_T2}, s{TS_PAIRS[4]}")
            a.e(f"v_mov_b32 v{V_ACC}, s{TS_PAIRS[3]}")
            a.e(f"v_mov_b32 v{V_ACC+1}, s{TS_PAIRS[2]}")
            a.e(f"buffer_atomic_umax v{V_T1}, v{V_T0}, {sr(R_X,4)}, 0 offen sc1")
            a.e(f"buffer_atomic_umax v{V_T2}, v{V_T0}, {sr(R_X,4)}, 0 offen offset:4 sc1")
            a.e(f"buffer_atomic_umax v{V_ACC}, v{V_T0}, {sr(R_X,4)}, 0 offen offset:8 sc1")
            a.e(f"buffer_atomic_umax v{V_ACC+1}, v{V_T0}, {sr(R_X,4)}, 0 offen offset:12 sc1")
            a.e("s_branch L_end")
        if opt.ts == 8:
            a.e(f"s_mov_b32 s{R_X}, s{S_DBG}")
            a.e(f"s_mov_b32 s{R_X+1}, s{S_DBG+1}")
            a.e(f"s_mov_b32 s{R_X+2}, 256")
            a.e(f"s_mov_b32 s{R_X+3}, 0x00020000")
            a.e(f"v_mov_b32 v{V_T0}, 0")
            a.e("s_mov_b64 exec, 1")
            def amax(sreg, off, inv=False):
                a.e(f"v_mov_b32 v{V_T1}, s{sreg}")
                if inv: a.e(f"v_not_b32 v{V_T1}, v{V_T1}")
                a.e(f"buffer_atomic_umax v{V_T1}, v{V_T0}, {sr(R_X,4)}, 0 offen offset:{off} sc1")
                a.e("s_waitcnt vmcnt(0)")
            amax(TS_PAIRS[0], 0, True)
            amax(TS_PAIRS[0], 4)
            amax(TS_PAIRS[3], 16)
            amax(TS_PAIRS[4], 20)
            amax(TS_PAIRS[3], 28, True)
            a.e(f"s_cmp_eq_u32 s{S_W}, 0")
            a.e("s_cbranch_scc0 L_ts1")
            amax(TS_PAIRS[1], 8)
            amax(TS_PAIRS[2], 12)
            amax(TS_PAIRS[1], 32, True)
            amax(TS_PAIRS[2], 36, True)
            a.e("s_branch L_end")
            a.label("L_ts1")
            amax(TS_PAIRS[1], 24)
            a.e("s_branch L_end")
        for k in range(5):
            a.e(f"v_mov_b32 v{V_ACC+k}, s{TS_PAIRS[k]}")
        a.e(f"s_getreg_b32 s{S_T}, hwreg(HW_REG_XCC_ID)")
        a.e(f"v_mov_b32 v{V_ACC+5}, s{S_T}")
        a.e(f"s_getreg_b32 s{S_T}, hwreg(HW_REG_HW_ID)")
        a.e(f"v_mov_b32 v{V_ACC+6}, s{S_T}")
        a.e(f"v_mov_b32 v{V_ACC+7}, s77")
        a.e(f"s_lshl_b32 s{S_T}, s2, 3")
        a.e(f"s_add_u32 s{S_T}, s{S_T}, s{S_W}")
        a.e(f"s_lshl_b32 s{S_T}, s{S_T}, 6")
        a.e(f"s_add_u32 s{S_T}, s{S_T}, {WS_TS}")
        a.e(f"v_mov_b32 v{V_T0}, 0")
        a.e("s_mov_b64 exec, 1")
        a.e(f"buffer_store_dwordx4 {vr(V_ACC,4)}, v{V_T0}, {sr(R_WS,4)}, s{S_T} offen")
        a.e(f"buffer_store_dwordx4 {vr(V_ACC+4,4)}, v{V_T0}, {sr(R_WS,4)}, s{S_T} offen offset:16")
    return a

def group4(a, m, t):
    tp = "vcc" if t == "vcc" else f"s[{t}:{t+1}]"
    tl = "vcc_lo" if t == "vcc" else f"s{t}"
    a.e(f"s_lshr_b64 {tp}, s[{m}:{m+1}], 1")
    a.e(f"s_or_b64 s[{m}:{m+1}], s[{m}:{m+1}], {tp}")
    a.e(f"s_lshr_b64 {tp}, s[{m}:{m+1}], 2")
    a.e(f"s_or_b64 s[{m}:{m+1}], s[{m}:{m+1}], {tp}")
    a.e(f"s_and_b32 s{m}, s{m}, 0x11111111")
    a.e(f"s_and_b32 s{m+1}, s{m+1}, 0x11111111")
    a.e(f"s_mul_i32 s{m}, s{m}, 15")
    a.e(f"s_mul_i32 s{m+1}, s{m+1}, 15")
    a.e(f"s_or_b32 {tl}, s{m}, s{m+1}")

def tagmask(a, P, dst):
    a.e(f"v_cmp_ne_u32_sdwa s[{dst}:{dst+1}], v{P}, v{V_TAG8} src0_sel:BYTE_0 src1_sel:BYTE_0")
    for r in range(1, 4):
        m = SX_M + 2*(r-1)
        a.e(f"v_cmp_ne_u32_sdwa s[{m}:{m+1}], v{P+r}, v{V_TAG8} src0_sel:BYTE_0 src1_sel:BYTE_0")
    a.nop(4)
    a.e(f"s_or_b64 s[{SX_M}:{SX_M+1}], s[{SX_M}:{SX_M+1}], s[{SX_M+2}:{SX_M+3}]")
    a.e(f"s_or_b64 s[{dst}:{dst+1}], s[{dst}:{dst+1}], s[{SX_M+4}:{SX_M+5}]")
    a.e(f"s_or_b64 s[{dst}:{dst+1}], s[{dst}:{dst+1}], s[{SX_M}:{SX_M+1}]")
    group4(a, dst, SX_M)

def poll(a, opt, name, P, voff, soff, init_lo, init_hi, sleep):
    N = SX_NEED
    a.e(f"s_mov_b32 s{N}, {init_lo}")
    a.e(f"s_mov_b32 s{N+1}, {init_hi}")
    a.e(f"s_mov_b32 s{S_SPIN}, 0")
    a.label(f"L_{name}poll")
    a.e(f"s_mov_b64 exec, s[{N}:{N+1}]")
    a.e(f"buffer_load_dwordx4 {vr(P,4)}, v{voff}, {sr(R_WS,4)}, s{soff} offen sc1")
    a.e("s_waitcnt vmcnt(0)")
    tagmask(a, P, N)
    a.e(f"s_cbranch_scc0 L_{name}ok")
    a.e(f"s_add_u32 s{S_SPIN}, s{S_SPIN}, 1")
    a.e(f"s_cmp_gt_u32 s{S_SPIN}, {SPINMAX}")
    a.e(f"s_cbranch_scc1 L_{name}ok")
    if sleep: a.e(f"s_sleep {sleep}")
    a.e(f"s_branch L_{name}poll")
    a.label(f"L_{name}ok")
    a.e("s_mov_b64 exec, -1")

def gen_tail(a, opt):
    WOA = [[slot(0) + 6*k + 2*t for t in range(3)] for k in range(3)]
    O = slot(2)
    X = V_ACC
    a.c("prefetch wo^T A-fragments: tile nt = w + 8k, K-step t")
    for k in range(3):
        for t in range(3):
            a.e(f"ds_read_b64_tr_b16 {vr(WOA[k][t],2)}, v{AD_TR} offset:{L_WO+10240*t+256*k}")
    a.c("hop 1 gather: waves 0,1 (b = wave): lane l: s = l/16, chunk = l%16")
    a.e(f"s_cmp_lt_u32 s{S_W}, 2")
    a.e("s_cbranch_scc0 L_h1done")
    poll(a, opt, "h1", O, AD_H1, SX_H1, "-1", "-1", opt.hsleep)
    if opt.ts in (4, 9): stamp(a, opt, 2)
    Ml, Mm = X, X + 1
    a.e(f"v_mov_b32_dpp v{Ml}, v{O} row_newbcast:12 row_mask:0xf bank_mask:0xf")
    a.e(f"v_mov_b32_dpp v{Mm}, v{O+1} row_newbcast:12 row_mask:0xf bank_mask:0xf")
    a.e(f"v_and_b32 v{Mm}, 0xffffff00, v{Mm}")
    Mx = X + 2
    a.e(f"v_mov_b32 v{Mx}, v{Mm}")
    allred_rows(a, "v_max_f32", Mx, X + 3)
    a.e(f"v_sub_f32 v{Mm}, v{Mm}, v{Mx}")
    a.e(f"v_exp_f32 v{Mm}, v{Mm}")
    a.e("s_nop 0")
    a.e(f"v_mul_f32 v{Ml}, v{Mm}, v{Ml}")
    for r in range(4):
        a.e(f"v_mul_f32 v{O+r}, v{Mm}, v{O+r}")
    a.e(f"v_mov_b32 v{X+3}, v{Ml}")
    a.nop(1)
    a.e(f"v_permlane32_swap_b32 v{O}, v{O+2}")
    a.e(f"v_permlane32_swap_b32 v{O+1}, v{O+3}")
    a.e(f"v_permlane16_swap_b32 v{Ml}, v{X+3}")
    a.e(f"v_add_f32 v{O}, v{O}, v{O+2}")
    a.e(f"v_add_f32 v{O+1}, v{O+1}, v{O+3}")
    a.e(f"v_add_f32 v{Ml}, v{Ml}, v{X+3}")
    a.e(f"v_mov_b32 v{X+3}, v{Ml}")
    a.nop(1)
    a.e(f"v_permlane16_swap_b32 v{O}, v{O+1}")
    a.e(f"v_permlane32_swap_b32 v{Ml}, v{X+3}")
    a.e(f"v_add_f32 v{O}, v{O}, v{O+1}")
    a.e(f"v_add_f32 v{Ml}, v{Ml}, v{X+3}")
    a.e(f"v_rcp_f32 v{Ml}, v{Ml}")
    a.e("s_nop 0")
    a.e(f"v_mul_f32 v{O}, v{O}, v{Ml}")
    a.e(f"v_cvt_pk_bf16_f32 v{O}, v{O}, v{O}")
    a.e(f"s_mov_b32 exec_lo, 0x0fff0fff")
    a.e(f"s_mov_b32 exec_hi, 0x0fff0fff")
    a.e(f"ds_write_b16 v{AD_OBW}, v{O} offset:{L_OBF}")
    a.e("s_mov_b64 exec, -1")
    a.label("L_h1done")
    a.e("s_waitcnt lgkmcnt(0)")
    a.e("s_barrier")
    a.c("out-proj MFMA")
    B = [slot(4) + 2*t for t in range(3)]
    for t in range(3):
        a.e(f"ds_read_b64 {vr(B[t],2)}, v{AD_B} offset:{L_OBF+32*t}")
    D = [V_ACC + 4*k for k in range(3)]
    for t in range(3):
        a.e(f"s_waitcnt lgkmcnt({2-t})")
        for k in range(3):
            src = "0" if t == 0 else vr(D[k], 4)
            a.e(f"v_mfma_f32_16x16x16_bf16 {vr(D[k],4)}, {vr(WOA[k][t],2)}, {vr(B[t],2)}, {src}")
    a.e(f"s_mov_b32 exec_lo, 0x00030003")
    a.e(f"s_mov_b32 exec_hi, 0x00030003")
    a.nop(4)
    for k in range(3):
        for r in range(4):
            a.e(f"v_bfi_b32 v{D[k]+r}, v{V_FF}, v{V_TAG8}, v{D[k]+r}")
        if k == 2:
            a.e(f"s_cmp_lt_u32 s{S_W}, 4")
            a.e("s_cbranch_scc0 L_no3")
        a.e(f"buffer_store_dwordx4 {vr(D[k],4)}, v{AD_ST}, {sr(R_WS,4)}, s{SX_ST+k} offen sc1")
    a.label("L_no3")
    a.e("s_mov_b64 exec, -1")
    if opt.ts == 4: stamp(a, opt, 3)
    a.c("hop 2: all 8 waves of WGs rec < 80; wave k sums producers 16k..16k+15")
    a.e(f"s_cmp_lt_u32 s{S_REC}, 80")
    a.e("s_cbranch_scc0 L_fin")
    P = slot(5)
    poll(a, opt, "h2", P, AD_L16, SX_H2, "-1", "-1", opt.h2sleep)
    reduce4_rows(a, P)
    a.nop(2)
    a.e(f"v_add_f32_dpp v{P}, v{P}, v{P} row_ror:8 row_mask:0xf bank_mask:0xf")
    a.nop(2)
    a.e(f"v_add_f32_dpp v{P}, v{P}, v{P} row_ror:4 row_mask:0xf bank_mask:0xf")
    a.e(f"s_mov_b32 exec_lo, 0x000f000f")
    a.e(f"s_mov_b32 exec_hi, 0x000f000f")
    a.e(f"ds_write_b32 v{AD_FW}, v{P} offset:{L_FIN}")
    a.e("s_mov_b64 exec, -1")
    a.e("s_waitcnt lgkmcnt(0)")
    a.e("s_barrier")
    a.e(f"s_cmp_eq_u32 s{S_W}, 0")
    a.e("s_cbranch_scc0 L_fin")
    a.e(f"v_lshlrev_b32 v{V_T0}, 2, v{V_LANE}")
    F = slot(6)
    for k in range(4):
        a.e(f"ds_read2_b32 {vr(F+2*k,2)}, v{V_T0} offset0:{(L_FIN % 1024)//4 + 32*k} offset1:{(L_FIN % 1024)//4 + 32*k + 16}" if False else
            f"ds_read2_b32 {vr(F+2*k,2)}, v{V_T2} offset0:{32*k} offset1:{32*k+16}")
    a.lines.insert(len(a.lines)-4, f"    v_add_u32 v{V_T2}, {L_FIN}, v{V_T0}")
    a.e(f"v_lshlrev_b32 v{V_T1}, 1, v{V_LANE}")
    a.e("s_waitcnt lgkmcnt(0)")
    a.e(f"v_add_f32 v{F}, v{F}, v{F+1}")
    a.e(f"v_add_f32 v{F+2}, v{F+2}, v{F+3}")
    a.e(f"v_add_f32 v{F+4}, v{F+4}, v{F+5}")
    a.e(f"v_add_f32 v{F+6}, v{F+6}, v{F+7}")
    a.e(f"v_add_f32 v{F}, v{F}, v{F+2}")
    a.e(f"v_add_f32 v{F+4}, v{F+4}, v{F+6}")
    a.e(f"v_add_f32 v{F}, v{F}, v{F+4}")
    a.e(f"v_cvt_pk_bf16_f32 v{F}, v{F}, v{F}")
    a.e("s_mov_b64 exec, 0xffff")
    a.e(f"buffer_store_short v{F}, v{V_T1}, {sr(R_OUT,4)}, s{SX_OUT} offen")
    a.e(f"s_cmp_eq_u32 s{S_REC}, 0")
    a.e("s_cbranch_scc0 L_fin2")
    a.e(f"v_mov_b32 v{V_T0}, s{S_TAG}")
    a.e("s_mov_b64 exec, 1")
    a.e(f"buffer_store_dword v{V_T0}, v{AD_ZERO}, {sr(R_WS,4)}, {WS_EPOCH} offen sc1")
    a.label("L_fin2")
    a.e("s_mov_b64 exec, -1")
    a.label("L_fin")

def finish(a):
    a.label("L_end")
    a.e("s_endpgm")
    a.lines.append('.section .rodata,"a"')
    a.lines.append(".p2align 6")
    a.lines.append(f".amdhsa_kernel {KNAME}")
    for l in ["next_free_vgpr 256", "next_free_sgpr 102", "accum_offset 256", "group_segment_fixed_size 0",
              "kernarg_size 64", "user_sgpr_count 2", "user_sgpr_kernarg_segment_ptr 1", "system_sgpr_workgroup_id_x 1"]:
        a.lines.append("  .amdhsa_" + l)
    a.lines.append(".end_amdhsa_kernel")
    return "\n".join(a.lines) + "\n"

def parser():
    p = argparse.ArgumentParser()
    p.add_argument("--nt", type=int, default=1)
    p.add_argument("--ts", type=int, default=0)
    p.add_argument("--grid", type=int, default=256)
    p.add_argument("--qdelay", type=int, default=32)
    p.add_argument("--qsleep", type=int, default=8)
    p.add_argument("--hsleep", type=int, default=1)
    p.add_argument("--h2sleep", type=int, default=1)
    p.add_argument("--fine", type=int, default=5)
    p.add_argument("--tgroups", type=int, default=9)
    p.add_argument("--map", type=int, default=2)
    p.add_argument("--ajoin", type=int, default=1)
    p.add_argument("--nsa", type=int, default=16)
    p.add_argument("--nsmall", type=int, default=32)
    p.add_argument("--nsb", type=int, default=8)
    p.add_argument("--cstride", type=int, default=16640)
    p.add_argument("--noq", type=int, default=0)
    p.add_argument("--nowo", type=int, default=0)
    p.add_argument("--notail", type=int, default=0)
    p.add_argument("-o", default="k.s")
    return p

if __name__ == "__main__":
    opt = parser().parse_args()
    setcfg(opt.nsa, opt.nsb, opt.nsmall)
    a = gen(opt)
    open(opt.o, "w").write(finish(a))
    print("wrote", opt.o, len(a.lines), "lines")
```

```python
import sys, argparse, struct

KNAME = "standalone__sliding_block_cached__decode_kernel"

def f32bits(x):
    return struct.unpack("<I", struct.pack("<f", x))[0]

class A:
    def __init__(self):
        self.lines = []
        self.vm = []
    def e(self, s):
        self.lines.append("    " + s)
    def c(self, s):
        self.lines.append("    ; " + s)
    def label(self, n):
        self.lines.append(n + ":")
    def vmem(self, s, tag=None):
        self.e(s)
        self.vm.append(tag)
        assert len(self.vm) <= 63, ("too many outstanding", len(self.vm))
    def throttle(self, D, add=1):
        if D and len(self.vm) + add > D:
            n = D - add
            self.e(f"s_waitcnt vmcnt({n})")
            self.vm = self.vm[len(self.vm) - n:] if n > 0 else []
    def wait_vm(self, tag):
        if tag not in self.vm:
            return
        idx = max(i for i, t in enumerate(self.vm) if t == tag)
        n = len(self.vm) - 1 - idx
        self.e(f"s_waitcnt vmcnt({n})")
        self.vm = self.vm[idx + 1:]
    def nop(self, n):
        while n > 0:
            k = min(n, 16)
            self.e(f"s_nop {k-1}")
            n -= k

def vr(a, n=1):
    return f"v{a}" if n == 1 else f"v[{a}:{a+n-1}]"
def sr(a, n=1):
    return f"s{a}" if n == 1 else f"s[{a}:{a+n-1}]"

V_TID, V_LANE, V_OFFKV, V_OFFW = 0, 1, 2, 3
V_X = 4
V_TAG8 = 3
V_FF = 4
V_LDSP = 5
V_L = 6
V_MC = 7
V_OFFD = 8
V_T0, V_T1, V_T2 = 9, 10, 11
V_Q = 12
V_S = 24
V_ACC = 40
V_RING = 64

S_X, S_K, S_V, S_WQ, S_WO, S_OUT, S_DBG, S_WS = 4, 6, 8, 10, 12, 14, 16, 18
R_K, R_V, R_WQ, R_X, R_WO, R_WS, R_OUT = 20, 24, 28, 32, 36, 40, 44
S_EPOCH = 3
S_TAG = 48
S_RQ, S_CH = 49, 50
S_CNT = 51
S_GOFF = 52
S_WOFF = 68
S_H, S_I, S_B, S_W = 78, 79, 80, 81
S_T = 82
S_REC = 94
S_SPIN = 95
TS_PAIRS = [96, 98, 100, 90, 92]

L_WO = 0
L_PART = 32768
L_QBF = 40960
L_OBF = 41472
L_M = 41984
L_FLAG = 42048
L_SFLAG = 42064
L_TAG = 42112
L_DCNT = 42048 + 32
L_SIZE = 43008

WS_EPOCH = 0
WS_H1 = 0x100000
WS_H2 = 0x200000
WS_QX = 0x300000
WS_TS = 0x400000
WS_CNT = 0x600000
CNT_STRIDE = 16640
NSA = 16
NSB = 8
def setcfg(nsa, nsb, nsmall=32):
    global NSA, NSB, STAT_ROWS, POOL_ROW0, NTASK
    NSA, NSB = nsa, nsb
    STAT_ROWS = 3*8*NSA + 5*8*NSB
    POOL_ROW0 = 4*STAT_ROWS
    global NT1, NT2
    pool = 4096 - POOL_ROW0
    NT2 = nsmall
    assert (pool - 8*NT2) % 16 == 0
    NT1 = (pool - 8*NT2)//16
    NTASK = NT1 + NT2
setcfg(16, 8)
WS_SIZE = 1610612736

AD_FIN, AD_L16, AD_H1, AD_OBW, AD_B, AD_ST, AD_TR, AD_ZERO, AD_FW = [V_RING + 12*15 + k for k in range(9)]
AD_DMA = V_RING + 12*14
SX_DMA = 59
SX_ST3 = 50
SX_REC, SX_H1, SX_ST, SX_H2, SX_OUT, SX_NEED, SX_M = 52, 53, 54, 57, 58, 60, 62
L_FIN = L_PART
LOG2E = f32bits(1.4426950408889634)
SCALE = f32bits(192 ** -0.5)
SPINMAX = 1 << 17

def slot(g):
    return V_RING + 12 * g

def reduce24(a, acc):
    a.nop(3)
    for j in range(3):
        for e in range(4):
            a.e(f"v_permlane32_swap_b32 v{acc+8*j+e}, v{acc+8*j+e+4}")
    for j in range(3):
        for e in range(4):
            a.e(f"v_add_f32 v{acc+8*j+e}, v{acc+8*j+e}, v{acc+8*j+e+4}")
    a.nop(2)
    for j in range(3):
        for e in range(2):
            a.e(f"v_permlane16_swap_b32 v{acc+8*j+e}, v{acc+8*j+e+2}")
    for j in range(3):
        for e in range(2):
            a.e(f"v_add_f32 v{acc+8*j+e}, v{acc+8*j+e}, v{acc+8*j+e+2}")
    a.nop(2)
    for j in range(3):
        a.e(f"v_add_f32_dpp v{acc+8*j}, v{acc+8*j}, v{acc+8*j} row_ror:8 row_mask:0xf bank_mask:0x3")
    for j in range(3):
        a.e(f"v_add_f32_dpp v{acc+8*j}, v{acc+8*j+1}, v{acc+8*j+1} row_ror:8 row_mask:0xf bank_mask:0xc")

def allred_rows(a, op, v, t):
    a.e(f"v_mov_b32 v{t}, v{v}")
    a.nop(2)
    a.e(f"v_permlane16_swap_b32 v{v}, v{t}")
    a.e(f"{op} v{v}, v{v}, v{t}")
    a.e(f"v_mov_b32 v{t}, v{v}")
    a.nop(2)
    a.e(f"v_permlane32_swap_b32 v{v}, v{t}")
    a.e(f"{op} v{v}, v{v}, v{t}")

def allred_hi(a, op, v, t):
    a.nop(2)
    a.e(f"{op}_dpp v{v}, v{v}, v{v} row_ror:8 row_mask:0xf bank_mask:0xf")
    allred_rows(a, op, v, t)

def reduce4_rows(a, P):
    a.nop(2)
    a.e(f"v_permlane32_swap_b32 v{P}, v{P+2}")
    a.e(f"v_permlane32_swap_b32 v{P+1}, v{P+3}")
    a.e(f"v_add_f32 v{P}, v{P}, v{P+2}")
    a.e(f"v_add_f32 v{P+1}, v{P+1}, v{P+3}")
    a.nop(2)
    a.e(f"v_permlane16_swap_b32 v{P}, v{P+1}")
    a.e(f"v_add_f32 v{P}, v{P}, v{P+1}")

def stamp(a, opt, k):
    if opt.ts:
        p = TS_PAIRS[k]
        a.e(f"s_memrealtime s[{p}:{p+1}]")

def forms(a, src, odd, lo, hi):
    if not odd:
        a.e(f"v_and_b32 v{lo}, 0xffff, v{src}")
        a.e(f"v_lshlrev_b32 v{hi}, 16, v{src}")
    else:
        a.e(f"v_lshrrev_b32 v{lo}, 16, v{src}")
        a.e(f"v_and_b32 v{hi}, 0xffff0000, v{src}")

def pv(a, base, acc, lo, hi):
    for j in range(3):
        for i in range(4):
            w = base + 4*j + i
            a.e(f"v_dot2c_f32_bf16 v{acc+8*j+2*i}, v{w}, v{lo}")
            a.e(f"v_dot2c_f32_bf16 v{acc+8*j+2*i+1}, v{w}, v{hi}")

def tagcheck(a, P, t, dst):
    a.e(f"v_xor_b32 v{t}, v{P}, v{V_TAG8}")
    a.e(f"v_xor_b32 v{t+1}, v{P+1}, v{V_TAG8}")
    a.e(f"v_xor_b32 v{t+2}, v{P+2}, v{V_TAG8}")
    a.e(f"v_xor_b32 v{t+3}, v{P+3}, v{V_TAG8}")
    a.e(f"v_or3_b32 v{t}, v{t}, v{t+1}, v{t+2}")
    a.e(f"v_or_b32 v{t}, v{t}, v{t+3}")
    a.e(f"v_and_b32 v{t}, v{V_FF}, v{t}")
    a.e(f"v_cmp_ne_u32 {dst}, 0, v{t}")

def gen(opt):
    a = A()
    nt = " nt" if opt.nt else ""
    a.lines.append(f"; @launch grid=({opt.grid},1,1) block=(512,1,1) lds={L_SIZE}")
    a.lines.append('.amdgcn_target "amdgcn-amd-amdhsa--gfx950"')
    a.lines.append(".text")
    a.lines.append(f".globl {KNAME}")
    a.lines.append(".p2align 8")
    a.lines.append(f".type {KNAME},@function")
    a.label(KNAME)
    a.e("s_cmp_ge_u32 s2, 256")
    a.e("s_cbranch_scc1 L_end")
    a.e("s_load_dwordx16 s[4:19], s[0:1], 0")
    stamp(a, opt, 0)
    if opt.map == 1:
        a.e(f"s_lshr_b32 s{S_H}, s2, 3")
        a.e(f"s_and_b32 s{S_I}, s2, 7")
    elif opt.map == 3:
        a.e(f"s_lshr_b32 s{S_H}, s2, 3")
        a.e(f"s_and_b32 s{S_T}, s2, 7")
        a.e(f"s_lshr_b32 s{S_T+1}, s{S_T}, 2")
        a.e(f"s_xor_b32 s{S_T+1}, s{S_T+1}, s{S_T}")
        a.e(f"s_and_b32 s{S_T+1}, s{S_T+1}, 1")
        a.e(f"s_lshl_b32 s{S_T+1}, s{S_T+1}, 2")
        a.e(f"s_lshr_b32 s{S_T}, s{S_T}, 1")
        a.e(f"s_add_u32 s{S_I}, s{S_T}, s{S_T+1}")
    elif opt.map == 2:
        a.e(f"s_lshr_b32 s{S_H}, s2, 3")
        a.e(f"s_and_b32 s{S_T}, s2, 7")
        a.e(f"s_bcnt1_i32_b32 s{S_T+1}, s{S_T}")
        a.e(f"s_and_b32 s{S_T+1}, s{S_T+1}, 1")
        a.e(f"s_lshl_b32 s{S_T+1}, s{S_T+1}, 2")
        a.e(f"s_lshr_b32 s{S_T}, s{S_T}, 1")
        a.e(f"s_add_u32 s{S_I}, s{S_T}, s{S_T+1}")
    else:
        a.e(f"s_and_b32 s{S_T}, s2, 7")
        a.e(f"s_lshr_b32 s{S_T+1}, s2, 3")
        a.e(f"s_and_b32 s{S_T+2}, s{S_T+1}, 3")
        a.e(f"s_lshl_b32 s{S_T+2}, s{S_T+2}, 3")
        a.e(f"s_add_u32 s{S_H}, s{S_T}, s{S_T+2}")
        a.e(f"s_lshr_b32 s{S_I}, s{S_T+1}, 2")
    a.e(f"s_lshr_b32 s{S_B}, s{S_I}, 2")
    a.e(f"s_lshl_b32 s{S_REC}, s{S_H}, 3")
    a.e(f"s_add_u32 s{S_REC}, s{S_REC}, s{S_I}")
    a.e(f"s_lshr_b32 s{S_RQ}, s{S_I}, 1")
    a.e(f"s_and_b32 s{S_CH}, s{S_I}, 1")
    a.e(f"v_and_b32 v{V_LANE}, 63, v{V_TID}")
    a.e(f"v_lshrrev_b32 v{V_T0}, 6, v{V_TID}")
    a.e(f"v_lshrrev_b32 v{V_T1}, 3, v{V_LANE}")
    a.e(f"v_and_b32 v{V_T2}, 7, v{V_LANE}")
    a.e(f"v_readfirstlane_b32 s{S_W}, v{V_T0}")
    a.e(f"v_lshlrev_b32 v{V_T2}, 4, v{V_T2}")
    a.e(f"v_mul_u32_u24 v{V_OFFKV}, 384, v{V_T1}")
    a.e(f"v_add_u32 v{V_OFFKV}, v{V_OFFKV}, v{V_T2}")
    a.e(f"v_mul_u32_u24 v{V_OFFW}, {10*12288}, v{V_T1}")
    a.e(f"v_add_u32 v{V_OFFW}, v{V_OFFW}, v{V_T2}")
    a.e(f"v_mul_u32_u24 v{V_T0}, 20, v{V_T1}")
    a.e(f"v_mov_b32 v{V_T1}, 0")
    a.e(f"v_lshlrev_b32 v{V_T2}, 2, v{V_LANE}")
    a.e("s_mov_b64 exec, 0xffff")
    a.e(f"ds_write_b32 v{V_T2}, v{V_T1} offset:{L_FLAG}")
    a.e("s_mov_b64 exec, -1")
    if not opt.rot:
        for g in range(16):
            a.e(f"s_mov_b32 s{S_GOFF+g}, {3072*g}")
    for g in range(10):
        a.e(f"s_mov_b32 s{S_WOFF+g}, {12288*g}")
    if opt.rot:
        a.e(f"s_sub_u32 s{S_T}, s{S_W}, 1")
        a.e(f"s_cmp_lt_u32 s{S_T}, 3")
        a.e(f"s_cselect_b32 s{S_T+1}, {NSA-1}, {NSB-1}")
        a.e(f"s_mul_i32 s{S_T+2}, s{S_H}, {opt.rot}")
        a.e(f"s_lshr_b32 s{S_T+3}, s{S_I}, 2")
        a.e(f"s_mul_i32 s{S_T+3}, s{S_T+3}, 5")
        a.e(f"s_add_u32 s{S_T+2}, s{S_T+2}, s{S_T+3}")
        for g in range(16):
            a.e(f"s_add_u32 s{S_T}, s{S_T+2}, {g}")
            a.e(f"s_and_b32 s{S_T}, s{S_T}, s{S_T+1}")
            a.e(f"s_mul_i32 s{S_GOFF+g}, s{S_T}, 3072")
    a.e(f"v_mov_b32 v{V_OFFD}, v{V_OFFKV}")
    a.e(f"s_sub_u32 s{S_T}, s{S_W}, 1")
    a.e(f"s_mul_i32 s{S_T}, s{S_T}, {8*NSA*384}")
    a.e(f"s_sub_u32 s{S_T+1}, s{S_W}, 3")
    a.e(f"s_max_i32 s{S_T+1}, s{S_T+1}, 0")
    a.e(f"s_mul_i32 s{S_T+1}, s{S_T+1}, {8*NSB*384}")
    a.e(f"s_add_u32 s{S_T+1}, s{S_T+1}, {3*8*NSA*384}")
    a.e(f"s_sub_u32 s{S_T+2}, s{S_W}, 1")
    a.e(f"s_cmp_lt_u32 s{S_T+2}, 3")
    a.e(f"s_cselect_b32 s{S_T}, s{S_T}, s{S_T+1}")
    a.e(f"s_and_b32 s{S_T+1}, s{S_I}, 3")
    a.e(f"s_mul_i32 s{S_T+1}, s{S_T+1}, {STAT_ROWS*384}")
    a.e(f"s_add_u32 s{S_T}, s{S_T}, s{S_T+1}")
    a.e(f"v_add_u32 v{V_OFFKV}, s{S_T}, v{V_OFFKV}")
    a.e(f"s_mul_i32 s{S_T+2}, s{S_I}, 160")
    a.e(f"v_add_u32 v{V_T0}, s{S_T+2}, v{V_T0}")
    a.e(f"s_lshl_b32 s{S_T}, s{S_B}, 5")
    a.e(f"s_add_u32 s{S_T}, s{S_T}, s{S_H}")
    a.e(f"s_mul_i32 s{S_CNT}, s{S_T}, {opt.cstride}")
    a.e(f"s_add_u32 s{S_CNT}, s{S_CNT}, {WS_CNT}")
    a.e(f"s_mul_i32 s{S_T}, s{S_T}, 6291456")
    a.e(f"s_add_u32 s{S_T}, s{S_T}, 4718592")
    a.e(f"s_mul_i32 s{S_T+1}, s{S_H}, 384")
    a.e(f"s_mul_i32 s{S_T+3}, s{S_I}, {80*12288}")
    a.e(f"s_add_u32 s{S_T+1}, s{S_T+1}, s{S_T+3}")
    a.e(f"s_mul_i32 s{S_T+2}, s{S_H}, {192*1280}")
    a.e(f"s_mul_i32 s{S_T+3}, s{S_RQ}, {48*1280}")
    a.e(f"s_add_u32 s{S_T+2}, s{S_T+2}, s{S_T+3}")
    a.e(f"s_mul_i32 s{S_T+3}, s{S_CH}, 640")
    a.e(f"s_add_u32 s{S_T+2}, s{S_T+2}, s{S_T+3}")
    a.e("s_waitcnt lgkmcnt(0)")
    a.e("s_barrier")
    def srd(R, P, off_s, nbytes):
        if off_s is None:
            a.e(f"s_mov_b32 s{R}, s{P}")
            a.e(f"s_mov_b32 s{R+1}, s{P+1}")
        else:
            a.e(f"s_add_u32 s{R}, s{P}, s{off_s}")
            a.e(f"s_addc_u32 s{R+1}, s{P+1}, 0")
        a.e(f"s_mov_b32 s{R+2}, {nbytes}")
        a.e(f"s_mov_b32 s{R+3}, 0x00020000")
    srd(R_K, S_K, S_T, 4096*384)
    srd(R_WQ, S_WQ, S_T+1, 79*12288+384)
    srd(R_X, S_X, None, 2560)
    srd(R_V, S_V, S_T, 4096*384)
    srd(R_WO, S_WO, S_T+2, 47*1280+640)
    srd(R_WS, S_WS, None, WS_SIZE)
    srd(R_OUT, S_OUT, None, 2560)

    def load_grp(kind, g, sl, thr=None):
        R, voff, soff, fl = {"K": (R_K, V_OFFKV, S_GOFF + g, nt), "V": (R_V, V_OFFKV, S_GOFF + g, nt),
                             "W": (R_WQ, V_OFFW, S_WOFF + g, nt)}[kind]
        for j in range(3):
            if thr is None: thr = (kind == "K" and g < opt.tgroups)
            if opt.fine and thr: a.throttle(opt.fine, 1)
            a.vmem(f"buffer_load_dwordx4 {vr(slot(sl)+4*j,4)}, v{voff}, {sr(R,4)}, s{soff} offen offset:{128*j}{fl}", (kind, g))

    a.e(f"s_cmp_eq_u32 s{S_W}, 0")
    a.e("s_cbranch_scc0 L_main")
    a.c("wave 0: q projection partial + exchange")
    if opt.noq:
        a.e(f"s_and_b32 s{S_T+4}, s{S_I}, 3")
        a.e(f"s_cmp_eq_u32 s{S_T+4}, 0")
        a.e("s_cbranch_scc0 L_noinit0")
        a.e(f"v_mov_b32 v{V_T1}, 0")
        a.e("s_mov_b64 exec, 1")
        a.e(f"buffer_store_dword v{V_T1}, v{V_T1}, {sr(R_WS,4)}, s{S_CNT} offen sc1")
        a.e("s_mov_b64 exec, -1")
        a.e("s_waitcnt vmcnt(0)")
        a.label("L_noinit0")
        a.e(f"s_sleep {opt.noq}")
        a.e(f"v_mov_b32 v{V_T0}, 0")
        a.e(f"v_mov_b32 v{V_T2}, 1")
        a.e("s_mov_b64 exec, 1")
        a.e(f"ds_write_b32 v{V_T0}, v{V_T2} offset:{L_FLAG}")
        a.e("s_mov_b64 exec, -1")
        stamp(a, opt, 1)
        stamp(a, opt, 2)
        a.e("s_branch L_mainB")
    VE = slot(14)
    a.e(f"v_mov_b32 v{VE+1}, 0")
    a.vmem(f"buffer_load_dword v{VE}, v{VE+1}, {sr(R_WS,4)}, {WS_EPOCH} offen sc1", "x")
    X1 = slot(10)
    F1 = slot(10) + 6
    ACC1 = slot(11)
    a.vmem(f"buffer_load_dwordx4 {vr(slot(13),4)}, v{V_T0}, {sr(R_X,4)}, 0 offen", "x")
    X0 = slot(13)
    a.vmem(f"buffer_load_dword v{X0+4}, v{V_T0}, {sr(R_X,4)}, 0 offen offset:16", "x")
    a.vmem(f"buffer_load_dwordx4 {vr(X1,4)}, v{V_T0}, {sr(R_X,4)}, 0 offen offset:1280", "x")
    a.vmem(f"buffer_load_dword v{X1+4}, v{V_T0}, {sr(R_X,4)}, 0 offen offset:1296", "x")
    a.e(f"s_and_b32 s{S_T+4}, s{S_I}, 3")
    a.e(f"s_cmp_eq_u32 s{S_T+4}, 0")
    a.e("s_cbranch_scc0 L_noinit")
    a.e(f"v_mov_b32 v{V_T1}, 0")
    a.e("s_mov_b64 exec, 1")
    a.e(f"buffer_store_dword v{V_T1}, v{V_T1}, {sr(R_WS,4)}, s{S_CNT} offen sc1")
    a.e("s_mov_b64 exec, -1")
    a.label("L_noinit")
    for g in range(10):
        load_grp("W", g, g)
    for r in range(24):
        a.e(f"v_mov_b32 v{V_ACC+r}, 0")
        a.e(f"v_mov_b32 v{ACC1+r}, 0")
    for g in range(10):
        a.wait_vm(("W", g))
        forms(a, X0 + g//2, g % 2, V_T0, V_T1)
        forms(a, X1 + g//2, g % 2, F1, F1+1)
        pv(a, slot(g), V_ACC, V_T0, V_T1)
        pv(a, slot(g), ACC1, F1, F1+1)
    reduce24(a, V_ACC)
    reduce24(a, ACC1)
    a.e(f"v_readfirstlane_b32 s{S_EPOCH}, v{VE}")
    a.nop(4)
    a.e(f"s_add_u32 s{S_TAG}, s{S_EPOCH}, 1")
    G0, G1 = V_Q, V_Q + 4
    for j in range(3):
        a.e(f"v_mov_b32 v{G0+j}, v{V_ACC+8*j}")
        a.e(f"v_mov_b32 v{G1+j}, v{ACC1+8*j}")
    a.e(f"v_mov_b32 v{G0+3}, s{S_TAG}")
    a.e(f"v_mov_b32 v{G1+3}, s{S_TAG}")
    a.e(f"v_lshlrev_b32 v{V_T1}, 4, v{V_LANE}")
    a.e(f"s_lshl_b32 s{S_T}, s{S_H}, 14")
    a.e(f"s_add_u32 s{S_T}, s{S_T}, {WS_QX}")
    a.e(f"s_lshl_b32 s{S_T+1}, s{S_I}, 10")
    a.e(f"s_add_u32 s{S_T+1}, s{S_T+1}, s{S_T}")
    a.e(f"s_add_u32 s{S_T+2}, s{S_T+1}, 8192")
    a.e(f"buffer_store_dwordx4 {vr(G0,4)}, v{V_T1}, {sr(R_WS,4)}, s{S_T+1} offen sc1")
    a.e(f"buffer_store_dwordx4 {vr(G1,4)}, v{V_T1}, {sr(R_WS,4)}, s{S_T+2} offen sc1")
    if opt.ts in (1, 8): stamp(a, opt, 1)
    a.e(f"s_lshl_b32 s{S_T+1}, s{S_B}, 13")
    a.e(f"s_add_u32 s{S_T}, s{S_T}, s{S_T+1}")
    a.e(f"s_add_u32 s{S_T+1}, s{S_T}, 4096")
    GA = slot(0)
    QM = S_GOFF
    QM = S_WOFF
    qmask = [68, 70, 72, 74, 76, 84, 86, 88]
    for i in range(8):
        a.e(f"s_mov_b64 s[{qmask[i]}:{qmask[i]+1}], -1")
    a.e(f"s_mov_b32 s{S_SPIN}, 0")
    if opt.qdelay: a.e(f"s_sleep {opt.qdelay}")
    a.label("L_qpoll")
    for i in range(8):
        a.e(f"s_mov_b64 exec, s[{qmask[i]}:{qmask[i]+1}]")
        a.e(f"s_cbranch_execz L_qs{i}")
        a.e(f"buffer_load_dwordx4 {vr(GA+4*i,4)}, v{V_T1}, {sr(R_WS,4)}, s{S_T + (i//4)} offen offset:{1024*(i%4)} sc1")
        a.label(f"L_qs{i}")
    a.e("s_mov_b64 exec, -1")
    a.e("s_waitcnt vmcnt(0)")
    for i in range(8):
        a.e(f"v_cmp_ne_u32 s[{qmask[i]}:{qmask[i]+1}], s{S_TAG}, v{GA+4*i+3}")
    a.nop(5)
    for i in range(8):
        group4(a, qmask[i], "vcc")
    a.e(f"s_or_b64 vcc, s[{qmask[0]}:{qmask[0]+1}], s[{qmask[1]}:{qmask[1]+1}]")
    for i in range(2, 8):
        a.e(f"s_or_b64 vcc, vcc, s[{qmask[i]}:{qmask[i]+1}]")
    a.e("s_cbranch_scc0 L_qok")
    a.e(f"s_add_u32 s{S_SPIN}, s{S_SPIN}, 1")
    a.e(f"s_cmp_gt_u32 s{S_SPIN}, {SPINMAX}")
    a.e("s_cbranch_scc1 L_qok")
    if opt.qsleep: a.e(f"s_sleep {opt.qsleep}")
    a.e("s_branch L_qpoll")
    a.label("L_qok")
    if opt.ts in (1, 8): stamp(a, opt, 2)
    for j in range(3):
        a.e(f"v_add_f32 v{GA+j}, v{GA+j}, v{GA+4+j}")
        a.e(f"v_add_f32 v{GA+8+j}, v{GA+8+j}, v{GA+12+j}")
        a.e(f"v_add_f32 v{GA+16+j}, v{GA+16+j}, v{GA+20+j}")
        a.e(f"v_add_f32 v{GA+24+j}, v{GA+24+j}, v{GA+28+j}")
    for j in range(3):
        a.e(f"v_add_f32 v{GA+j}, v{GA+j}, v{GA+8+j}")
        a.e(f"v_add_f32 v{GA+16+j}, v{GA+16+j}, v{GA+24+j}")
    for j in range(3):
        a.e(f"v_add_f32 v{GA+j}, v{GA+j}, v{GA+16+j}")
    for j in range(3):
        a.e(f"v_cvt_pk_bf16_f32 v{GA+j}, v{GA+j}, v{GA+j}")
    a.e(f"v_and_b32 v{V_T0}, 7, v{V_LANE}")
    a.e(f"v_lshlrev_b32 v{V_T0}, 4, v{V_T0}")
    a.e(f"v_lshrrev_b32 v{V_T2}, 3, v{V_LANE}")
    a.e(f"v_lshl_add_u32 v{V_T0}, v{V_T2}, 1, v{V_T0}")
    for j in range(3):
        a.e(f"ds_write_b16 v{V_T0}, v{GA+j} offset:{L_QBF+128*j}")
    a.e(f"v_mov_b32 v{V_T0}, 0")
    a.e(f"v_mov_b32 v{V_T1}, s{S_TAG}")
    a.e(f"v_mov_b32 v{V_T2}, 1")
    a.e("s_mov_b64 exec, 1")
    a.e(f"ds_write_b32 v{V_T0}, v{V_T1} offset:{L_TAG}")
    a.e("s_waitcnt lgkmcnt(0)")
    a.e(f"ds_write_b32 v{V_T0}, v{V_T2} offset:{L_FLAG}")
    a.e("s_mov_b64 exec, -1")
    a.vm = []
    def pre_q(NS, sfx, dyn=False):
        for g in range(NS):
            load_grp("K", g, g)
        if dyn:
            for g in range(NS - 4):
                load_grp("V", g, NS + g, thr=(NS + g < opt.tgroups))
        a.e(f"v_and_b32 v{V_T0}, 7, v{V_LANE}")
        a.e(f"v_lshlrev_b32 v{V_T1}, 5, v{V_T0}")
        a.e(f"v_lshrrev_b32 v{V_T2}, 3, v{V_LANE}")
        a.e(f"v_lshl_add_u32 v{V_T1}, v{V_T2}, 2, v{V_T1}")
        a.e(f"s_lshl_b32 s{S_T}, s{S_W}, 10")
        a.e(f"v_add_u32 v{V_LDSP}, s{S_T}, v{V_T1}")
        for g in range(NS):
            a.e(f"v_mov_b32 v{V_S+g}, 0")
        if opt.ts in (1, 8):
            a.e(f"s_cmp_eq_u32 s{S_W}, 0")
            a.e(f"s_cbranch_scc1 L_nost0{sfx}")
            stamp(a, opt, 1)
            a.label(f"L_nost0{sfx}")
        a.e(f"v_mov_b32 v{V_T2}, 0")
        a.e(f"s_mov_b32 s{S_SPIN}, 0")
        a.label(f"L_qwait{sfx}")
        a.e(f"ds_read_b32 v{V_T1}, v{V_T2} offset:{L_FLAG}")
        a.e("s_waitcnt lgkmcnt(0)")
        a.e(f"v_cmp_ne_u32 vcc, 1, v{V_T1}")
        a.nop(5)
        a.e("s_cmp_eq_u64 vcc, 0")
        a.e(f"s_cbranch_scc1 L_qready{sfx}")
        a.e(f"s_add_u32 s{S_SPIN}, s{S_SPIN}, 1")
        a.e(f"s_cmp_gt_u32 s{S_SPIN}, {SPINMAX*16}")
        a.e(f"s_cbranch_scc1 L_qready{sfx}")
        a.e("s_sleep 4")
        a.e(f"s_branch L_qwait{sfx}")
        a.label(f"L_qready{sfx}")
        a.e(f"v_lshlrev_b32 v{V_T0}, 4, v{V_T0}")
        for j in range(3):
            a.e(f"ds_read_b128 {vr(V_Q+4*j,4)}, v{V_T0} offset:{L_QBF+128*j}")
        a.e(f"ds_read_b32 v{V_TAG8}, v{V_T2} offset:{L_TAG}")
        a.e(f"v_mov_b32 v{V_FF}, 0xff")
        a.e("s_waitcnt lgkmcnt(0)")
        a.e(f"v_readfirstlane_b32 s{S_TAG}, v{V_TAG8}")
        a.e(f"v_and_b32 v{V_TAG8}, 0xff, v{V_TAG8}")
        if dyn:
            atomic()
            for g in range(NS - 4, NS):
                load_grp("V", g, NS + g)
            a.e(f"s_lshl_b32 s{S_T}, s{S_W}, 2")
            a.e(f"v_mov_b32 v{V_T1}, s{S_T}")
            a.e(f"v_mov_b32 v{V_T2}, 1")
            a.e("s_mov_b64 exec, 1")
            a.e(f"ds_write_b32 v{V_T1}, v{V_T2} offset:{L_SFLAG-16}")
            a.e("s_mov_b64 exec, -1")
        a.e("s_waitcnt lgkmcnt(0)")
        if opt.ts in (1, 8):
            a.e(f"s_cmp_eq_u32 s{S_W}, 0")
            a.e(f"s_cbranch_scc1 L_nost{sfx}")
            stamp(a, opt, 2)
            a.label(f"L_nost{sfx}")

    V_IDX = V_T2 + 0
    V_IDX = V_S + 15
    def atomic():
        a.e(f"v_mov_b32 v{V_IDX}, 1")
        a.e(f"v_mov_b32 v{V_IDX-1}, 0")
        a.e("s_mov_b64 exec, 1")
        a.vmem(f"buffer_atomic_add v{V_IDX}, v{V_IDX-1}, {sr(R_WS,4)}, s{S_CNT} offen sc0 sc1", "atom")
        a.e("s_mov_b64 exec, -1")

    def k_phase(NS, dyn):
        a.c("K phase")
        for g in range(NS):
            a.wait_vm(("K", g))
            for j in range(3):
                for i in range(4):
                    a.e(f"v_dot2c_f32_bf16 v{V_S+g}, v{slot(g)+4*j+i}, v{V_Q+4*j+i}")
            if not dyn:
                load_grp("V", g, g)

    def round_scores(regs, T):
        n = len(regs) // 2
        for k in range(n):
            a.e(f"v_cvt_pk_bf16_f32 v{T+k}, v{regs[2*k]}, v{regs[2*k+1]}")
        for k in range(n):
            a.e(f"v_lshlrev_b32 v{regs[2*k]}, 16, v{T+k}")
            a.e(f"v_and_b32 v{regs[2*k+1]}, 0xffff0000, v{T+k}")
        for r in regs:
            a.e(f"v_mul_f32 v{r}, 0x{SCALE:08x}, v{r}")
        for k in range(n):
            a.e(f"v_cvt_pk_bf16_f32 v{T+k}, v{regs[2*k]}, v{regs[2*k+1]}")
        for k in range(n):
            a.e(f"v_lshlrev_b32 v{regs[2*k]}, 16, v{T+k}")
            a.e(f"v_and_b32 v{regs[2*k+1]}, 0xffff0000, v{T+k}")

    def finish_l():
        allred_hi(a, "v_add_f32", V_L, V_T0)
        a.e(f"v_mul_f32 v{V_T2}, 0x{LOG2E:08x}, v{V_MC}")
        a.e(f"s_lshl_b32 s{S_T}, s{S_W}, 10")
        a.e(f"v_mov_b32 v{V_T0}, s{S_T}")
        a.e(f"s_lshl_b32 s{S_T}, s{S_W}, 2")
        a.e(f"v_mov_b32 v{V_T1}, s{S_T}")
        a.e("s_mov_b64 exec, 1")
        a.e(f"ds_write_b32 v{V_T0}, v{V_L} offset:{L_PART+768}")
        a.e(f"ds_write_b32 v{V_T1}, v{V_T2} offset:{L_M}")
        a.e("s_mov_b64 exec, -1")

    def tail_prep():
        c16, g16 = V_T0, V_T1
        a.e(f"v_and_b32 v{c16}, 15, v{V_LANE}")
        a.e(f"v_lshrrev_b32 v{g16}, 4, v{V_LANE}")
        a.e(f"v_mul_u32_u24 v{AD_FIN}, 192, v{g16}")
        a.e(f"v_lshl_add_u32 v{AD_FIN}, v{c16}, 4, v{AD_FIN}")
        a.e(f"v_mov_b32 v{V_T2}, 768")
        a.e(f"v_cmp_gt_u32 vcc, 12, v{c16}")
        a.e(f"v_lshlrev_b32 v{AD_L16}, 4, v{V_LANE}")
        a.e(f"v_lshlrev_b32 v{AD_H1}, 10, v{g16}")
        a.e(f"v_cndmask_b32 v{AD_FIN}, v{V_T2}, v{AD_FIN}, vcc")
        a.e(f"v_lshl_add_u32 v{AD_H1}, v{c16}, 4, v{AD_H1}")
        a.e(f"v_lshlrev_b32 v{AD_OBW}, 3, v{c16}")
        a.e(f"v_lshl_add_u32 v{AD_OBW}, v{g16}, 1, v{AD_OBW}")
        a.e(f"s_lshl_b32 s{S_T}, s{S_W}, 7")
        a.e(f"v_add_u32 v{AD_OBW}, s{S_T}, v{AD_OBW}")
        a.e(f"v_and_b32 v{V_T2}, 1, v{V_LANE}")
        a.e(f"v_lshlrev_b32 v{AD_B}, 7, v{V_T2}")
        a.e(f"v_lshl_add_u32 v{AD_B}, v{g16}, 3, v{AD_B}")
        a.e(f"v_mul_u32_u24 v{AD_ST}, {40*8192}, v{V_T2}")
        a.e(f"v_lshl_add_u32 v{AD_ST}, v{g16}, 4, v{AD_ST}")
        a.e(f"v_lshlrev_b32 v{AD_TR}, 2, v{g16}")
        a.e(f"v_bfe_u32 v{V_T2}, v{V_LANE}, 2, 2")
        a.e(f"v_add_u32 v{AD_TR}, v{AD_TR}, v{V_T2}")
        a.e(f"v_mul_u32_u24 v{AD_TR}, 640, v{AD_TR}")
        a.e(f"v_and_b32 v{V_T2}, 3, v{V_LANE}")
        a.e(f"v_lshl_add_u32 v{AD_TR}, v{V_T2}, 3, v{AD_TR}")
        a.e(f"s_sub_u32 s{S_T}, s{S_W}, 2")
        a.e(f"s_lshl_b32 s{S_T}, s{S_T}, 5")
        a.e(f"v_add_u32 v{AD_TR}, s{S_T}, v{AD_TR}")
        a.e(f"v_mov_b32 v{AD_ZERO}, 0")
        a.e(f"s_sub_u32 s{S_T}, s{S_W}, 2")
        a.e(f"s_lshl_b32 s{SX_DMA}, s{S_T}, 10")
        a.e(f"s_lshl_b32 s{S_T}, s{S_T}, 6")
        for k in range(5):
            t = AD_DMA + k
            a.e(f"v_add_u32 v{t}, s{S_T}, v{V_LANE}")
            if k: a.e(f"v_add_u32 v{t}, {384*k}, v{t}")
            a.e(f"v_mul_u32_u24 v{V_T2}, 52429, v{t}")
            a.e(f"v_lshrrev_b32 v{V_T2}, 21, v{V_T2}")
            a.e(f"v_mul_u32_u24 v{V_T2}, 640, v{V_T2}")
            a.e(f"v_lshl_add_u32 v{t}, v{t}, 4, v{V_T2}")
        a.e(f"v_and_b32 v{V_T2}, 3, v{V_LANE}")
        a.e(f"v_lshlrev_b32 v{AD_FW}, 4, v{V_T2}")
        a.e(f"v_lshl_add_u32 v{AD_FW}, v{g16}, 2, v{AD_FW}")
        a.e(f"s_lshl_b32 s{S_T}, s{S_W}, 6")
        a.e(f"v_add_u32 v{AD_FW}, s{S_T}, v{AD_FW}")
        a.e(f"s_lshl_b32 s{SX_REC}, s{S_REC}, 10")
        a.e(f"s_add_u32 s{SX_REC}, s{SX_REC}, {WS_H1}")
        a.e(f"s_lshl_b32 s{SX_H1}, s{S_H}, 3")
        a.e(f"s_lshl_b32 s{S_T}, s{S_W}, 2")
        a.e(f"s_add_u32 s{SX_H1}, s{SX_H1}, s{S_T}")
        a.e(f"s_lshl_b32 s{SX_H1}, s{SX_H1}, 10")
        a.e(f"s_lshl_b32 s{S_T}, s{S_RQ}, 8")
        a.e(f"s_add_u32 s{SX_H1}, s{SX_H1}, s{S_T}")
        a.e(f"s_add_u32 s{SX_H1}, s{SX_H1}, {WS_H1}")
        a.e(f"s_mul_i32 s{SX_ST}, s{S_CH}, 20")
        a.e(f"s_add_u32 s{SX_ST}, s{SX_ST}, s{S_W}")
        a.e(f"s_sub_u32 s{SX_ST}, s{SX_ST}, 2")
        a.e(f"s_lshl_b32 s{SX_ST}, s{SX_ST}, 13")
        a.e(f"s_lshl_b32 s{S_T}, s{S_H}, 2")
        a.e(f"s_add_u32 s{S_T}, s{S_T}, s{S_RQ}")
        a.e(f"s_lshl_b32 s{S_T}, s{S_T}, 6")
        a.e(f"s_add_u32 s{SX_ST}, s{SX_ST}, s{S_T}")
        a.e(f"s_add_u32 s{SX_ST}, s{SX_ST}, {WS_H2}")
        a.e(f"s_add_u32 s{SX_ST+1}, s{SX_ST}, 49152")
        a.e(f"s_add_u32 s{SX_ST+2}, s{SX_ST}, 98304")
        a.e(f"s_add_u32 s{SX_ST3}, s{SX_ST}, 147456")
        a.e(f"s_lshl_b32 s{SX_H2}, s{S_REC}, 13")
        a.e(f"s_lshl_b32 s{S_T}, s{S_W}, 10")
        a.e(f"s_add_u32 s{SX_H2}, s{SX_H2}, s{S_T}")
        a.e(f"s_add_u32 s{SX_H2}, s{SX_H2}, {WS_H2}")
        a.e(f"s_cmp_ge_u32 s{S_REC}, 40")
        a.e(f"s_cselect_b32 s{S_T}, 40, 0")
        a.e(f"s_cselect_b32 s{S_T+1}, 1280, 0")
        a.e(f"s_sub_u32 s{SX_OUT}, s{S_REC}, s{S_T}")
        a.e(f"s_lshl_b32 s{SX_OUT}, s{SX_OUT}, 5")
        a.e(f"s_add_u32 s{SX_OUT}, s{SX_OUT}, s{S_T+1}")

    dmac = [0]
    def wo_dma():
        dmac[0] += 1
        u = dmac[0]
        a.e(f"s_cmp_lt_u32 s{S_W}, 2")
        a.e(f"s_cbranch_scc1 L_nodma{u}")
        for k in range(5):
            a.e(f"s_add_u32 m0, s{SX_DMA}, {L_WO + 6144*k}")
            a.e("s_nop 0")
            a.e(f"buffer_load_dwordx4 v{AD_DMA+k}, {sr(R_WO,4)}, 0 offen{nt} lds")
        a.label(f"L_nodma{u}")

    def softmax(NS):
        a.c("softmax")
        a.nop(3)
        for ctl in ["quad_perm:[1,0,3,2]", "quad_perm:[2,3,0,1]", "row_half_mirror"]:
            for g in range(NS):
                a.e(f"v_add_f32_dpp v{V_S+g}, v{V_S+g}, v{V_S+g} {ctl} row_mask:0xf bank_mask:0xf")
        round_scores([V_S+g for g in range(NS)], V_ACC)
        M = V_MC
        a.e(f"v_max3_f32 v{M}, v{V_S}, v{V_S+1}, v{V_S+2}")
        k = 3
        while k + 1 < NS:
            a.e(f"v_max3_f32 v{M}, v{M}, v{V_S+k}, v{V_S+k+1}")
            k += 2
        if k < NS:
            a.e(f"v_max_f32 v{M}, v{M}, v{V_S+k}")
        allred_hi(a, "v_max_f32", M, V_T0)
        for g in range(NS):
            a.e(f"v_sub_f32 v{V_S+g}, v{V_S+g}, v{M}")
        for g in range(NS):
            a.e(f"v_mul_f32 v{V_S+g}, 0x{LOG2E:08x}, v{V_S+g}")
        for g in range(NS):
            a.e(f"v_exp_f32 v{V_S+g}, v{V_S+g}")
        a.e("s_nop 0")
        a.e(f"v_add_f32 v{V_L}, v{V_S}, v{V_S+1}")
        for g in range(2, NS):
            a.e(f"v_add_f32 v{V_L}, v{V_L}, v{V_S+g}")
        for k in range(NS//2):
            a.e(f"v_cvt_pk_bf16_f32 v{V_S+k}, v{V_S+2*k}, v{V_S+2*k+1}")
        for r in range(24):
            a.e(f"v_mov_b32 v{V_ACC+r}, 0")

    def v_phase(g0, g1, base=0):
        for g in range(g0, g1):
            a.wait_vm(("V", g))
            forms(a, V_S + g//2, g % 2, V_T0, V_T1)
            pv(a, slot(base + g), V_ACC, V_T0, V_T1)

    S_SOF = S_T + 2
    def issue_task(buf, big):
        if opt.ts: a.e("s_add_u32 s77, s77, 1")
        if big:
            a.e(f"s_mul_i32 s{S_SOF}, s{S_T}, 6144")
            a.e(f"s_add_u32 s{S_SOF}, s{S_SOF}, {POOL_ROW0*384}")
            a.e(f"s_add_u32 s{S_SOF+1}, s{S_SOF}, 3072")
        else:
            a.e(f"s_mul_i32 s{S_SOF}, s{S_T}, 3072")
            a.e(f"s_add_u32 s{S_SOF}, s{S_SOF}, {(POOL_ROW0 + 16*NT1 - 8*NT1)*384}")
        for (R, off) in [(R_K, 0), (R_V, 2)]:
            for gg in range(2 if big else 1):
                for j in range(3):
                    a.e(f"buffer_load_dwordx4 {vr(slot(buf+off+gg)+4*j,4)}, v{V_OFFD}, {sr(R,4)}, s{S_SOF+gg} offen offset:{128*j}{nt}")
        atomic()

    def read_idx(n_younger):
        a.e(f"s_waitcnt vmcnt({n_younger})")
        a.e(f"v_readfirstlane_b32 s{S_T}, v{V_IDX}")
        a.nop(4)

    def proc_k(buf, big, uid):
        s0, s1 = V_S, V_S + 1
        t = V_S + 2
        a.e(f"v_mov_b32 v{s0}, 0")
        a.e(f"v_mov_b32 v{s1}, 0")
        a.e(f"s_waitcnt vmcnt({7 if big else 4})")
        if big:
            for i in range(12):
                a.e(f"v_dot2c_f32_bf16 v{s0}, v{slot(buf)+i}, v{V_Q+i}")
                a.e(f"v_dot2c_f32_bf16 v{s1}, v{slot(buf+1)+i}, v{V_Q+i}")
            a.nop(3)
            for ctl in ["quad_perm:[1,0,3,2]", "quad_perm:[2,3,0,1]", "row_half_mirror"]:
                a.e(f"v_add_f32_dpp v{s0}, v{s0}, v{s0} {ctl} row_mask:0xf bank_mask:0xf")
                a.e(f"v_add_f32_dpp v{s1}, v{s1}, v{s1} {ctl} row_mask:0xf bank_mask:0xf")
                a.nop(1)
            round_scores([s0, s1], t)
            mn = t + 1
            a.e(f"v_max_f32 v{mn}, v{s0}, v{s1}")
        else:
            for i in range(6):
                a.e(f"v_dot2c_f32_bf16 v{s0}, v{slot(buf)+i}, v{V_Q+i}")
                a.e(f"v_dot2c_f32_bf16 v{s1}, v{slot(buf)+6+i}, v{V_Q+6+i}")
            a.nop(3)
            a.e(f"v_add_f32 v{s0}, v{s0}, v{s1}")
            for ctl in ["quad_perm:[1,0,3,2]", "quad_perm:[2,3,0,1]", "row_half_mirror"]:
                a.nop(2)
                a.e(f"v_add_f32_dpp v{s0}, v{s0}, v{s0} {ctl} row_mask:0xf bank_mask:0xf")
            a.e(f"v_cvt_pk_bf16_f32 v{t}, v{s0}, v{s0}")
            a.e(f"v_and_b32 v{s0}, 0xffff0000, v{t}")
            a.e(f"v_mul_f32 v{s0}, 0x{SCALE:08x}, v{s0}")
            a.e(f"v_cvt_pk_bf16_f32 v{t}, v{s0}, v{s0}")
            a.e(f"v_and_b32 v{s0}, 0xffff0000, v{t}")
            mn = t + 1
            a.e(f"v_mov_b32 v{mn}, v{s0}")
        allred_hi(a, "v_max_f32", mn, t + 2)
        a.e(f"v_cmp_gt_f32 vcc, v{mn}, v{V_MC}")
        a.nop(5)
        a.e("s_cmp_eq_u64 vcc, 0")
        a.e(f"s_cbranch_scc1 L_nors{uid}")
        a.e(f"v_sub_f32 v{t+2}, v{V_MC}, v{mn}")
        a.e(f"v_mul_f32 v{t+2}, 0x{LOG2E:08x}, v{t+2}")
        a.e(f"v_exp_f32 v{t+2}, v{t+2}")
        a.e(f"v_mov_b32 v{V_MC}, v{mn}")
        a.e(f"v_mul_f32 v{V_L}, v{t+2}, v{V_L}")
        for r in range(24):
            a.e(f"v_mul_f32 v{V_ACC+r}, v{t+2}, v{V_ACC+r}")
        a.label(f"L_nors{uid}")
        regs = [s0, s1] if big else [s0]
        for r in regs: a.e(f"v_sub_f32 v{r}, v{r}, v{V_MC}")
        for r in regs: a.e(f"v_mul_f32 v{r}, 0x{LOG2E:08x}, v{r}")
        for r in regs: a.e(f"v_exp_f32 v{r}, v{r}")
        a.e("s_nop 0")
        for r in regs: a.e(f"v_add_f32 v{V_L}, v{V_L}, v{r}")
        if big:
            a.e(f"v_cvt_pk_bf16_f32 v{t}, v{s0}, v{s1}")
            forms(a, t, 0, t+1, t+2)
            forms(a, t, 1, t+3, t+4)
        else:
            a.e(f"v_cvt_pk_bf16_f32 v{t}, v{s0}, v{s0}")
            forms(a, t, 0, t+1, t+2)

    def proc_v(buf, big):
        t = V_S + 2
        pv(a, slot(buf+2), V_ACC, t+1, t+2)
        if big: pv(a, slot(buf+3), V_ACC, t+3, t+4)

    def body(buf, other, big, name, oname):
        a.label(f"L_body{name}")
        proc_k(buf, big, name)
        read_idx(0)
        a.e(f"s_cmp_lt_u32 s{S_T}, {NT1}")
        a.e(f"s_cbranch_scc1 L_nb{name}")
        a.e(f"s_cmp_lt_u32 s{S_T}, {NT1+NT2}")
        a.e(f"s_cbranch_scc1 L_ns{name}")
        if opt.ts == 1: stamp(a, opt, 2)
        wo_dma()
        proc_v(buf, big)
        finish_l()
        a.e("s_branch L_vdone")
        a.label(f"L_nb{name}")
        issue_task(other, True)
        proc_v(buf, big)
        a.e(f"s_branch L_body{oname}B")
        a.label(f"L_ns{name}")
        issue_task(other, False)
        proc_v(buf, big)
        a.e(f"s_branch L_body{oname}S")

    def start_tasks(sfx):
        a.e(f"s_cmp_lt_u32 s{S_T}, {NT1}")
        a.e(f"s_cbranch_scc1 L_sb{sfx}")
        a.e(f"s_cmp_lt_u32 s{S_T}, {NT1+NT2}")
        a.e(f"s_cbranch_scc1 L_ss{sfx}")
        wo_dma()
        finish_l()
        a.e("s_branch L_vdone")
        a.label(f"L_sb{sfx}")
        issue_task(0, True)
        a.e("s_branch L_bodyXB")
        a.label(f"L_ss{sfx}")
        issue_task(0, False)
        a.e("s_branch L_bodyXS")

    a.e("s_branch L_mainB")
    a.label("L_main")
    a.e(f"s_cmp_lt_u32 s{S_W}, 4")
    a.e("s_cbranch_scc0 L_mainB")
    if opt.ts: a.e("s_mov_b32 s77, 0")
    pre_q(NSA, "A")
    k_phase(NSA, False)
    softmax(NSA)
    v_phase(0, NSA)
    tail_prep()
    a.e(f"s_lshl_b32 s{S_T}, s{S_W}, 2")
    a.e(f"v_mov_b32 v{V_T2}, s{S_T}")
    a.e(f"s_mov_b32 s{S_SPIN}, 0")
    a.label("L_pwait")
    a.e(f"ds_read_b32 v{V_T1}, v{V_T2} offset:{L_SFLAG}")
    a.e("s_waitcnt lgkmcnt(0)")
    a.e(f"v_cmp_ne_u32 vcc, 1, v{V_T1}")
    a.nop(5)
    a.e("s_cmp_eq_u64 vcc, 0")
    a.e(f"s_cbranch_scc1 L_pok")
    a.e(f"s_add_u32 s{S_SPIN}, s{S_SPIN}, 1")
    a.e(f"s_cmp_gt_u32 s{S_SPIN}, {SPINMAX*16}")
    a.e(f"s_cbranch_scc1 L_pok")
    a.e("s_sleep 8")
    a.e(f"s_branch L_pwait")
    a.label("L_pok")
    a.vm = []
    atomic()
    read_idx(0)
    start_tasks("A")
    a.label("L_mainB")
    a.vm = []
    if opt.ts: a.e("s_mov_b32 s77, 0")
    pre_q(NSB, "B", True)
    k_phase(NSB, True)
    softmax(NSB)
    a.wait_vm("atom")
    a.e(f"v_readfirstlane_b32 s{S_T}, v{V_IDX}")
    a.nop(4)
    vm_save = list(a.vm)
    a.e(f"s_cmp_lt_u32 s{S_T}, {NT1}")
    a.e("s_cbranch_scc0 L_rare")
    issue_task(0, True)
    a.vm = vm_save + ["t"]*13
    v_phase(0, NSB, NSB)
    tail_prep()
    a.e("s_branch L_bodyXB")
    a.label("L_rare")
    a.vm = vm_save
    a.e(f"s_mov_b32 s{S_SOF+2}, s{S_T}")
    v_phase(0, NSB, NSB)
    tail_prep()
    a.e(f"s_mov_b32 s{S_T}, s{S_SOF+2}")
    start_tasks("B")
    body(0, 4, True, "XB", "Y")
    body(4, 0, True, "YB", "X")
    body(0, 4, False, "XS", "Y")
    body(4, 0, False, "YS", "X")
    a.label("L_vdone")
    a.vm = []
    if opt.ts in (1, 8): stamp(a, opt, 3)
    if opt.ts == 4: stamp(a, opt, 1)
    if opt.ts == 9: stamp(a, opt, 3)
    reduce24(a, V_ACC)
    for j in range(3):
        a.e(f"ds_write_b32 v{V_LDSP}, v{V_ACC+8*j} offset:{L_PART+256*j}")
    a.e("s_waitcnt lgkmcnt(0)")
    a.e("s_barrier")
    a.e(f"s_cmp_eq_u32 s{S_W}, 0")
    a.e("s_cbranch_scc0 L_nopub")
    regs = [slot(8) + 4*k for k in range(8)]
    MW = V_S
    a.e(f"ds_read_b128 {vr(MW,4)}, v{AD_ZERO} offset:{L_M}")
    a.e(f"ds_read_b128 {vr(MW+4,4)}, v{AD_ZERO} offset:{L_M+16}")
    for w in range(8):
        a.e(f"ds_read_b128 {vr(regs[w],4)}, v{AD_FIN} offset:{L_PART+1024*w}")
    a.e("s_waitcnt lgkmcnt(8)")
    Mx = V_S + 8
    a.e(f"v_max3_f32 v{Mx}, v{MW}, v{MW+1}, v{MW+2}")
    a.e(f"v_max3_f32 v{Mx+1}, v{MW+3}, v{MW+4}, v{MW+5}")
    a.e(f"v_max3_f32 v{Mx}, v{Mx}, v{MW+6}, v{MW+7}")
    a.e(f"v_max_f32 v{Mx}, v{Mx}, v{Mx+1}")
    a.e(f"v_and_b32 v{Mx}, 0xffffff00, v{Mx}")
    for w in range(8):
        a.e(f"v_sub_f32 v{MW+w}, v{MW+w}, v{Mx}")
    for w in range(8):
        a.e(f"v_exp_f32 v{MW+w}, v{MW+w}")
    Y = V_S + 12
    Y2 = V_ACC
    for w in range(8):
        if w % 2 == 0: a.e(f"s_waitcnt lgkmcnt({6-w})")
        dst = Y if w % 2 == 0 else Y2
        for r in range(4):
            if w < 2:
                a.e(f"v_mul_f32 v{dst+r}, v{MW+w}, v{regs[w]+r}")
            else:
                a.e(f"v_fmac_f32 v{dst+r}, v{MW+w}, v{regs[w]+r}")
    for r in range(4):
        a.e(f"v_add_f32 v{Y+r}, v{Y+r}, v{Y2+r}")
    a.e("s_mov_b32 exec_lo, 0x10001000")
    a.e("s_mov_b32 exec_hi, 0x10001000")
    a.e(f"v_mov_b32 v{Y+1}, v{Mx}")
    a.e("s_mov_b64 exec, -1")
    for r in range(4):
        a.e(f"v_bfi_b32 v{Y+r}, v{V_FF}, v{V_TAG8}, v{Y+r}")
    a.e(f"buffer_store_dwordx4 {vr(Y,4)}, v{AD_L16}, {sr(R_WS,4)}, s{SX_REC} offen sc1")
    a.label("L_nopub")
    if not opt.notail: gen_tail(a, opt)
    if opt.ts:
        a.label("L_ts")
        if opt.ts in (1, 4, 8, 9): stamp(a, opt, 4)
        a.e("s_waitcnt lgkmcnt(0)")
        if opt.ts == 9:
            a.e(f"s_cmp_eq_u32 s{S_W}, 0")
            a.e("s_cbranch_scc0 L_end")
            a.e(f"s_cmp_lt_u32 s{S_REC}, 80")
            a.e("s_cbranch_scc0 L_end")
            a.e(f"s_mov_b32 s{R_X}, s{S_DBG}")
            a.e(f"s_mov_b32 s{R_X+1}, s{S_DBG+1}")
            a.e(f"s_mov_b32 s{R_X+2}, 256")
            a.e(f"s_mov_b32 s{R_X+3}, 0x00020000")
            a.e(f"v_mov_b32 v{V_T0}, 0")
            a.e("s_mov_b64 exec, 1")
            a.e(f"v_mov_b32 v{V_T1}, s{TS_PAIRS[0]}")
            a.e(f"v_not_b32 v{V_T1}, v{V_T1}")
            a.e(f"v_mov_b32 v{V_T2}, s{TS_PAIRS[4]}")
            a.e(f"v_mov_b32 v{V_ACC}, s{TS_PAIRS[3]}")
            a.e(f"v_mov_b32 v{V_ACC+1}, s{TS_PAIRS[2]}")
            a.e(f"buffer_atomic_umax v{V_T1}, v{V_T0}, {sr(R_X,4)}, 0 offen sc1")
            a.e(f"buffer_atomic_umax v{V_T2}, v{V_T0}, {sr(R_X,4)}, 0 offen offset:4 sc1")
            a.e(f"buffer_atomic_umax v{V_ACC}, v{V_T0}, {sr(R_X,4)}, 0 offen offset:8 sc1")
            a.e(f"buffer_atomic_umax v{V_ACC+1}, v{V_T0}, {sr(R_X,4)}, 0 offen offset:12 sc1")
            a.e("s_branch L_end")
        if opt.ts == 8:
            a.e(f"s_mov_b32 s{R_X}, s{S_DBG}")
            a.e(f"s_mov_b32 s{R_X+1}, s{S_DBG+1}")
            a.e(f"s_mov_b32 s{R_X+2}, 256")
            a.e(f"s_mov_b32 s{R_X+3}, 0x00020000")
            a.e(f"v_mov_b32 v{V_T0}, 0")
            a.e("s_mov_b64 exec, 1")
            def amax(sreg, off, inv=False):
                a.e(f"v_mov_b32 v{V_T1}, s{sreg}")
                if inv: a.e(f"v_not_b32 v{V_T1}, v{V_T1}")
                a.e(f"buffer_atomic_umax v{V_T1}, v{V_T0}, {sr(R_X,4)}, 0 offen offset:{off} sc1")
                a.e("s_waitcnt vmcnt(0)")
            amax(TS_PAIRS[0], 0, True)
            amax(TS_PAIRS[0], 4)
            amax(TS_PAIRS[3], 16)
            amax(TS_PAIRS[4], 20)
            amax(TS_PAIRS[3], 28, True)
            a.e(f"s_cmp_eq_u32 s{S_W}, 0")
            a.e("s_cbranch_scc0 L_ts1")
            amax(TS_PAIRS[1], 8)
            amax(TS_PAIRS[2], 12)
            amax(TS_PAIRS[1], 32, True)
            amax(TS_PAIRS[2], 36, True)
            a.e("s_branch L_end")
            a.label("L_ts1")
            amax(TS_PAIRS[1], 24)
            a.e("s_branch L_end")
        for k in range(5):
            a.e(f"v_mov_b32 v{V_ACC+k}, s{TS_PAIRS[k]}")
        a.e(f"s_getreg_b32 s{S_T}, hwreg(HW_REG_XCC_ID)")
        a.e(f"v_mov_b32 v{V_ACC+5}, s{S_T}")
        a.e(f"s_getreg_b32 s{S_T}, hwreg(HW_REG_HW_ID)")
        a.e(f"v_mov_b32 v{V_ACC+6}, s{S_T}")
        a.e(f"v_mov_b32 v{V_ACC+7}, s77")
        a.e(f"s_lshl_b32 s{S_T}, s2, 3")
        a.e(f"s_add_u32 s{S_T}, s{S_T}, s{S_W}")
        a.e(f"s_lshl_b32 s{S_T}, s{S_T}, 6")
        a.e(f"s_add_u32 s{S_T}, s{S_T}, {WS_TS}")
        a.e(f"v_mov_b32 v{V_T0}, 0")
        a.e("s_mov_b64 exec, 1")
        a.e(f"buffer_store_dwordx4 {vr(V_ACC,4)}, v{V_T0}, {sr(R_WS,4)}, s{S_T} offen")
        a.e(f"buffer_store_dwordx4 {vr(V_ACC+4,4)}, v{V_T0}, {sr(R_WS,4)}, s{S_T} offen offset:16")
    return a

def group4(a, m, t):
    tp = "vcc" if t == "vcc" else f"s[{t}:{t+1}]"
    tl = "vcc_lo" if t == "vcc" else f"s{t}"
    a.e(f"s_lshr_b64 {tp}, s[{m}:{m+1}], 1")
    a.e(f"s_or_b64 s[{m}:{m+1}], s[{m}:{m+1}], {tp}")
    a.e(f"s_lshr_b64 {tp}, s[{m}:{m+1}], 2")
    a.e(f"s_or_b64 s[{m}:{m+1}], s[{m}:{m+1}], {tp}")
    a.e(f"s_and_b32 s{m}, s{m}, 0x11111111")
    a.e(f"s_and_b32 s{m+1}, s{m+1}, 0x11111111")
    a.e(f"s_mul_i32 s{m}, s{m}, 15")
    a.e(f"s_mul_i32 s{m+1}, s{m+1}, 15")
    a.e(f"s_or_b32 {tl}, s{m}, s{m+1}")

def tagmask(a, P, dst):
    a.e(f"v_cmp_ne_u32_sdwa s[{dst}:{dst+1}], v{P}, v{V_TAG8} src0_sel:BYTE_0 src1_sel:BYTE_0")
    for r in range(1, 4):
        m = SX_M + 2*(r-1)
        a.e(f"v_cmp_ne_u32_sdwa s[{m}:{m+1}], v{P+r}, v{V_TAG8} src0_sel:BYTE_0 src1_sel:BYTE_0")
    a.nop(4)
    a.e(f"s_or_b64 s[{SX_M}:{SX_M+1}], s[{SX_M}:{SX_M+1}], s[{SX_M+2}:{SX_M+3}]")
    a.e(f"s_or_b64 s[{dst}:{dst+1}], s[{dst}:{dst+1}], s[{SX_M+4}:{SX_M+5}]")
    a.e(f"s_or_b64 s[{dst}:{dst+1}], s[{dst}:{dst+1}], s[{SX_M}:{SX_M+1}]")
    group4(a, dst, SX_M)

def poll(a, opt, name, P, voff, soff, init_lo, init_hi, sleep):
    N = SX_NEED
    a.e(f"s_mov_b32 s{N}, {init_lo}")
    a.e(f"s_mov_b32 s{N+1}, {init_hi}")
    a.e(f"s_mov_b32 s{S_SPIN}, 0")
    a.label(f"L_{name}poll")
    a.e(f"s_mov_b64 exec, s[{N}:{N+1}]")
    a.e(f"buffer_load_dwordx4 {vr(P,4)}, v{voff}, {sr(R_WS,4)}, s{soff} offen sc1")
    a.e("s_waitcnt vmcnt(0)")
    tagmask(a, P, N)
    a.e(f"s_cbranch_scc0 L_{name}ok")
    a.e(f"s_add_u32 s{S_SPIN}, s{S_SPIN}, 1")
    a.e(f"s_cmp_gt_u32 s{S_SPIN}, {SPINMAX}")
    a.e(f"s_cbranch_scc1 L_{name}ok")
    if sleep: a.e(f"s_sleep {sleep}")
    a.e(f"s_branch L_{name}poll")
    a.label(f"L_{name}ok")
    a.e("s_mov_b64 exec, -1")

def gen_tail(a, opt):
    WOA = [[slot(0) + 6*k + 2*t for t in range(3)] for k in range(4)]
    O = slot(2)
    X = V_ACC
    a.c("waves 2..7: wait for the WG's wo DMA, prefetch wo^T A-fragments (tile nt = w-2 + 6k)")
    a.e(f"s_cmp_lt_u32 s{S_W}, 2")
    a.e("s_cbranch_scc1 L_pollers")
    a.e(f"v_mov_b32 v{V_T0}, 1")
    a.e("s_waitcnt vmcnt(0)")
    a.e("s_mov_b64 exec, 1")
    a.e(f"ds_add_u32 v{AD_ZERO}, v{V_T0} offset:{L_DCNT}")
    a.e("s_mov_b64 exec, -1")
    a.e(f"s_mov_b32 s{S_SPIN}, 0")
    a.label("L_dwait")
    a.e(f"ds_read_b32 v{V_T1}, v{AD_ZERO} offset:{L_DCNT}")
    a.e("s_waitcnt lgkmcnt(0)")
    a.e(f"v_cmp_ne_u32 vcc, 6, v{V_T1}")
    a.nop(5)
    a.e("s_cmp_eq_u64 vcc, 0")
    a.e("s_cbranch_scc1 L_dok")
    a.e(f"s_add_u32 s{S_SPIN}, s{S_SPIN}, 1")
    a.e(f"s_cmp_gt_u32 s{S_SPIN}, {SPINMAX*16}")
    a.e("s_cbranch_scc1 L_dok")
    a.e("s_sleep 1")
    a.e("s_branch L_dwait")
    a.label("L_dok")
    for t in range(3):
        for k in range(4):
            a.e(f"ds_read_b64_tr_b16 {vr(WOA[k][t],2)}, v{AD_TR} offset:{L_WO+10240*t+192*k}")
    a.e("s_branch L_h1done")
    a.label("L_pollers")
    a.c("hop 1 gather: waves 0,1 (b = wave): lane l: s = l/16, chunk = l%16")
    poll(a, opt, "h1", O, AD_H1, SX_H1, "-1", "-1", opt.hsleep)
    if opt.ts in (4, 9): stamp(a, opt, 2)
    Ml, Mm = X, X + 1
    a.e(f"v_mov_b32_dpp v{Ml}, v{O} row_newbcast:12 row_mask:0xf bank_mask:0xf")
    a.e(f"v_mov_b32_dpp v{Mm}, v{O+1} row_newbcast:12 row_mask:0xf bank_mask:0xf")
    a.e(f"v_and_b32 v{Mm}, 0xffffff00, v{Mm}")
    Mx = X + 2
    a.e(f"v_mov_b32 v{Mx}, v{Mm}")
    allred_rows(a, "v_max_f32", Mx, X + 3)
    a.e(f"v_sub_f32 v{Mm}, v{Mm}, v{Mx}")
    a.e(f"v_exp_f32 v{Mm}, v{Mm}")
    a.e("s_nop 0")
    a.e(f"v_mul_f32 v{Ml}, v{Mm}, v{Ml}")
    for r in range(4):
        a.e(f"v_mul_f32 v{O+r}, v{Mm}, v{O+r}")
    a.e(f"v_mov_b32 v{X+3}, v{Ml}")
    a.nop(1)
    a.e(f"v_permlane32_swap_b32 v{O}, v{O+2}")
    a.e(f"v_permlane32_swap_b32 v{O+1}, v{O+3}")
    a.e(f"v_permlane16_swap_b32 v{Ml}, v{X+3}")
    a.e(f"v_add_f32 v{O}, v{O}, v{O+2}")
    a.e(f"v_add_f32 v{O+1}, v{O+1}, v{O+3}")
    a.e(f"v_add_f32 v{Ml}, v{Ml}, v{X+3}")
    a.e(f"v_mov_b32 v{X+3}, v{Ml}")
    a.nop(1)
    a.e(f"v_permlane16_swap_b32 v{O}, v{O+1}")
    a.e(f"v_permlane32_swap_b32 v{Ml}, v{X+3}")
    a.e(f"v_add_f32 v{O}, v{O}, v{O+1}")
    a.e(f"v_add_f32 v{Ml}, v{Ml}, v{X+3}")
    a.e(f"v_rcp_f32 v{Ml}, v{Ml}")
    a.e("s_nop 0")
    a.e(f"v_mul_f32 v{O}, v{O}, v{Ml}")
    a.e(f"v_cvt_pk_bf16_f32 v{O}, v{O}, v{O}")
    a.e(f"s_mov_b32 exec_lo, 0x0fff0fff")
    a.e(f"s_mov_b32 exec_hi, 0x0fff0fff")
    a.e(f"ds_write_b16 v{AD_OBW}, v{O} offset:{L_OBF}")
    a.e("s_mov_b64 exec, -1")
    a.label("L_h1done")
    a.e("s_waitcnt lgkmcnt(0)")
    a.e("s_barrier")
    a.c("out-proj MFMA (waves 2..7)")
    a.e(f"s_cmp_lt_u32 s{S_W}, 2")
    a.e("s_cbranch_scc1 L_nomfma")
    B = [slot(4) + 2*t for t in range(3)]
    for t in range(3):
        a.e(f"ds_read_b64 {vr(B[t],2)}, v{AD_B} offset:{L_OBF+32*t}")
    D = [V_ACC + 4*k for k in range(4)]
    for t in range(3):
        a.e(f"s_waitcnt lgkmcnt({2-t})")
        for k in range(4):
            src = "0" if t == 0 else vr(D[k], 4)
            a.e(f"v_mfma_f32_16x16x16_bf16 {vr(D[k],4)}, {vr(WOA[k][t],2)}, {vr(B[t],2)}, {src}")
    a.e(f"s_mov_b32 exec_lo, 0x00030003")
    a.e(f"s_mov_b32 exec_hi, 0x00030003")
    a.nop(3)
    sts = [SX_ST, SX_ST+1, SX_ST+2, SX_ST3]
    for k in range(4):
        if k == 3:
            a.e(f"s_cmp_lt_u32 s{S_W}, 4")
            a.e("s_cbranch_scc0 L_no3")
        for r in range(4):
            a.e(f"v_bfi_b32 v{D[k]+r}, v{V_FF}, v{V_TAG8}, v{D[k]+r}")
        a.e(f"buffer_store_dwordx4 {vr(D[k],4)}, v{AD_ST}, {sr(R_WS,4)}, s{sts[k]} offen sc1")
    a.label("L_no3")
    a.e("s_mov_b64 exec, -1")
    a.label("L_nomfma")
    if opt.ts == 4: stamp(a, opt, 3)
    a.c("hop 2: all 8 waves of WGs rec < 80; wave k sums producers 16k..16k+15")
    a.e(f"s_cmp_lt_u32 s{S_REC}, 80")
    a.e("s_cbranch_scc0 L_fin")
    P = slot(5)
    poll(a, opt, "h2", P, AD_L16, SX_H2, "-1", "-1", opt.h2sleep)
    reduce4_rows(a, P)
    a.nop(2)
    a.e(f"v_add_f32_dpp v{P}, v{P}, v{P} row_ror:8 row_mask:0xf bank_mask:0xf")
    a.nop(2)
    a.e(f"v_add_f32_dpp v{P}, v{P}, v{P} row_ror:4 row_mask:0xf bank_mask:0xf")
    a.e(f"s_mov_b32 exec_lo, 0x000f000f")
    a.e(f"s_mov_b32 exec_hi, 0x000f000f")
    a.e(f"ds_write_b32 v{AD_FW}, v{P} offset:{L_FIN}")
    a.e("s_mov_b64 exec, -1")
    a.e("s_waitcnt lgkmcnt(0)")
    a.e("s_barrier")
    a.e(f"s_cmp_eq_u32 s{S_W}, 0")
    a.e("s_cbranch_scc0 L_fin")
    a.e(f"v_lshlrev_b32 v{V_T0}, 2, v{V_LANE}")
    F = slot(6)
    for k in range(4):
        a.e(f"ds_read2_b32 {vr(F+2*k,2)}, v{V_T0} offset0:{(L_FIN % 1024)//4 + 32*k} offset1:{(L_FIN % 1024)//4 + 32*k + 16}" if False else
            f"ds_read2_b32 {vr(F+2*k,2)}, v{V_T2} offset0:{32*k} offset1:{32*k+16}")
    a.lines.insert(len(a.lines)-4, f"    v_add_u32 v{V_T2}, {L_FIN}, v{V_T0}")
    a.e(f"v_lshlrev_b32 v{V_T1}, 1, v{V_LANE}")
    a.e("s_waitcnt lgkmcnt(0)")
    a.e(f"v_add_f32 v{F}, v{F}, v{F+1}")
    a.e(f"v_add_f32 v{F+2}, v{F+2}, v{F+3}")
    a.e(f"v_add_f32 v{F+4}, v{F+4}, v{F+5}")
    a.e(f"v_add_f32 v{F+6}, v{F+6}, v{F+7}")
    a.e(f"v_add_f32 v{F}, v{F}, v{F+2}")
    a.e(f"v_add_f32 v{F+4}, v{F+4}, v{F+6}")
    a.e(f"v_add_f32 v{F}, v{F}, v{F+4}")
    a.e(f"v_cvt_pk_bf16_f32 v{F}, v{F}, v{F}")
    a.e("s_mov_b64 exec, 0xffff")
    a.e(f"buffer_store_short v{F}, v{V_T1}, {sr(R_OUT,4)}, s{SX_OUT} offen{opt.outfl}")
    a.e(f"s_cmp_eq_u32 s{S_REC}, 0")
    a.e("s_cbranch_scc0 L_fin2")
    a.e(f"v_mov_b32 v{V_T0}, s{S_TAG}")
    a.e("s_mov_b64 exec, 1")
    a.e(f"buffer_store_dword v{V_T0}, v{AD_ZERO}, {sr(R_WS,4)}, {WS_EPOCH} offen sc1")
    a.label("L_fin2")
    a.e("s_mov_b64 exec, -1")
    a.label("L_fin")

def finish(a):
    a.label("L_end")
    a.e("s_endpgm")
    a.lines.append('.section .rodata,"a"')
    a.lines.append(".p2align 6")
    a.lines.append(f".amdhsa_kernel {KNAME}")
    for l in ["next_free_vgpr 256", "next_free_sgpr 102", "accum_offset 256", "group_segment_fixed_size 0",
              "kernarg_size 64", "user_sgpr_count 2", "user_sgpr_kernarg_segment_ptr 1", "system_sgpr_workgroup_id_x 1"]:
        a.lines.append("  .amdhsa_" + l)
    a.lines.append(".end_amdhsa_kernel")
    return "\n".join(a.lines) + "\n"

def parser():
    p = argparse.ArgumentParser()
    p.add_argument("--nt", type=int, default=1)
    p.add_argument("--ts", type=int, default=0)
    p.add_argument("--grid", type=int, default=256)
    p.add_argument("--qdelay", type=int, default=32)
    p.add_argument("--qsleep", type=int, default=8)
    p.add_argument("--hsleep", type=int, default=1)
    p.add_argument("--h2sleep", type=int, default=1)
    p.add_argument("--fine", type=int, default=5)
    p.add_argument("--tgroups", type=int, default=9)
    p.add_argument("--map", type=int, default=2)
    p.add_argument("--ajoin", type=int, default=1)
    p.add_argument("--outfl", default="")
    p.add_argument("--rot", type=int, default=0)
    p.add_argument("--nsa", type=int, default=16)
    p.add_argument("--nsmall", type=int, default=32)
    p.add_argument("--nsb", type=int, default=8)
    p.add_argument("--cstride", type=int, default=16640)
    p.add_argument("--noq", type=int, default=0)
    p.add_argument("--nowo", type=int, default=0)
    p.add_argument("--notail", type=int, default=0)
    p.add_argument("-o", default="k.s")
    return p

if __name__ == "__main__":
    opt = parser().parse_args()
    setcfg(opt.nsa, opt.nsb, opt.nsmall)
    a = gen(opt)
    open(opt.o, "w").write(finish(a))
    print("wrote", opt.o, len(a.lines), "lines")
```

```python
import sys, argparse, struct

KNAME = "standalone__sliding_block_cached__decode_kernel"

def f32bits(x):
    return struct.unpack("<I", struct.pack("<f", x))[0]

class A:
    def __init__(self):
        self.lines = []
        self.vm = []
    def e(self, s):
        self.lines.append("    " + s)
    def c(self, s):
        self.lines.append("    ; " + s)
    def label(self, n):
        self.lines.append(n + ":")
    def vmem(self, s, tag=None):
        self.e(s)
        self.vm.append(tag)
        assert len(self.vm) <= 63, ("too many outstanding", len(self.vm))
    def throttle(self, D, add=1):
        if D and len(self.vm) + add > D:
            n = D - add
            self.e(f"s_waitcnt vmcnt({n})")
            self.vm = self.vm[len(self.vm) - n:] if n > 0 else []
    def wait_vm(self, tag):
        if tag not in self.vm:
            return
        idx = max(i for i, t in enumerate(self.vm) if t == tag)
        n = len(self.vm) - 1 - idx
        self.e(f"s_waitcnt vmcnt({n})")
        self.vm = self.vm[idx + 1:]
    def nop(self, n):
        while n > 0:
            k = min(n, 16)
            self.e(f"s_nop {k-1}")
            n -= k

def vr(a, n=1):
    return f"v{a}" if n == 1 else f"v[{a}:{a+n-1}]"
def sr(a, n=1):
    return f"s{a}" if n == 1 else f"s[{a}:{a+n-1}]"

V_TID, V_LANE, V_OFFKV, V_OFFW = 0, 1, 2, 3
V_X = 4
V_TAG8 = 3
V_FF = 4
V_LDSP = 5
V_L = 6
V_MC = 7
V_OFFD = 8
V_T0, V_T1, V_T2 = 9, 10, 11
V_Q = 12
V_S = 24
V_ACC = 40
V_RING = 64

S_X, S_K, S_V, S_WQ, S_WO, S_OUT, S_DBG, S_WS = 4, 6, 8, 10, 12, 14, 16, 18
R_K, R_V, R_WQ, R_X, R_WO, R_WS, R_OUT = 20, 24, 28, 32, 36, 40, 44
S_EPOCH = 3
S_TAG = 48
S_RQ, S_CH = 49, 50
S_CNT = 51
S_GOFF = 52
S_WOFF = 68
S_H, S_I, S_B, S_W = 78, 79, 80, 81
S_T = 82
S_REC = 94
S_SPIN = 95
TS_PAIRS = [96, 98, 100, 90, 92]

L_WO = 0
L_PART = 32768
L_QBF = 40960
L_OBF = 41472
L_M = 41984
L_FLAG = 42048
L_SFLAG = 42064
L_TAG = 42112
L_DCNT = 42048 + 32
L_SIZE = 43008

WS_EPOCH = 0
WS_H1 = 0x100000
WS_H2 = 0x200000
WS_QX = 0x300000
WS_TS = 0x400000
WS_CNT = 0x600000
CNT_STRIDE = 16640
NSA = 16
NSB = 8
def setcfg(nsa, nsb, nsmall=32):
    global NSA, NSB, STAT_ROWS, POOL_ROW0, NTASK
    NSA, NSB = nsa, nsb
    STAT_ROWS = 3*8*NSA + 5*8*NSB
    POOL_ROW0 = 4*STAT_ROWS
    global NT1, NT2
    pool = 4096 - POOL_ROW0
    NT2 = nsmall
    assert (pool - 8*NT2) % 16 == 0
    NT1 = (pool - 8*NT2)//16
    NTASK = NT1 + NT2
setcfg(16, 8)
WS_SIZE = 1610612736

AD_FIN, AD_L16, AD_H1, AD_OBW, AD_B, AD_ST, AD_TR, AD_ZERO, AD_FW = [V_RING + 12*15 + k for k in range(9)]
AD_DMA = V_RING + 12*14
AD_LW, AD_MW = V_RING + 12*14 + 5, V_RING + 12*14 + 6
SX_DMA = 59
SX_ST3 = 50
SX_REC, SX_H1, SX_ST, SX_H2, SX_OUT, SX_NEED, SX_M = 52, 53, 54, 57, 58, 60, 62
L_FIN = L_PART
LOG2E = f32bits(1.4426950408889634)
SCALE = f32bits(192 ** -0.5)
SPINMAX = 1 << 17

def slot(g):
    return V_RING + 12 * g

def reduce24(a, acc):
    a.nop(3)
    for j in range(3):
        for e in range(4):
            a.e(f"v_permlane32_swap_b32 v{acc+8*j+e}, v{acc+8*j+e+4}")
    for j in range(3):
        for e in range(4):
            a.e(f"v_add_f32 v{acc+8*j+e}, v{acc+8*j+e}, v{acc+8*j+e+4}")
    a.nop(2)
    for j in range(3):
        for e in range(2):
            a.e(f"v_permlane16_swap_b32 v{acc+8*j+e}, v{acc+8*j+e+2}")
    for j in range(3):
        for e in range(2):
            a.e(f"v_add_f32 v{acc+8*j+e}, v{acc+8*j+e}, v{acc+8*j+e+2}")
    a.nop(2)
    for j in range(3):
        a.e(f"v_add_f32_dpp v{acc+8*j}, v{acc+8*j}, v{acc+8*j} row_ror:8 row_mask:0xf bank_mask:0x3")
    for j in range(3):
        a.e(f"v_add_f32_dpp v{acc+8*j}, v{acc+8*j+1}, v{acc+8*j+1} row_ror:8 row_mask:0xf bank_mask:0xc")

def allred_rows(a, op, v, t):
    a.e(f"v_mov_b32 v{t}, v{v}")
    a.nop(2)
    a.e(f"v_permlane16_swap_b32 v{v}, v{t}")
    a.e(f"{op} v{v}, v{v}, v{t}")
    a.e(f"v_mov_b32 v{t}, v{v}")
    a.nop(2)
    a.e(f"v_permlane32_swap_b32 v{v}, v{t}")
    a.e(f"{op} v{v}, v{v}, v{t}")

def allred_hi(a, op, v, t):
    a.nop(2)
    a.e(f"{op}_dpp v{v}, v{v}, v{v} row_ror:8 row_mask:0xf bank_mask:0xf")
    allred_rows(a, op, v, t)

def reduce4_rows(a, P):
    a.nop(2)
    a.e(f"v_permlane32_swap_b32 v{P}, v{P+2}")
    a.e(f"v_permlane32_swap_b32 v{P+1}, v{P+3}")
    a.e(f"v_add_f32 v{P}, v{P}, v{P+2}")
    a.e(f"v_add_f32 v{P+1}, v{P+1}, v{P+3}")
    a.nop(2)
    a.e(f"v_permlane16_swap_b32 v{P}, v{P+1}")
    a.e(f"v_add_f32 v{P}, v{P}, v{P+1}")

def stamp(a, opt, k):
    if opt.ts:
        p = TS_PAIRS[k]
        a.e(f"s_memrealtime s[{p}:{p+1}]")

def forms(a, src, odd, lo, hi):
    if not odd:
        a.e(f"v_and_b32 v{lo}, 0xffff, v{src}")
        a.e(f"v_lshlrev_b32 v{hi}, 16, v{src}")
    else:
        a.e(f"v_lshrrev_b32 v{lo}, 16, v{src}")
        a.e(f"v_and_b32 v{hi}, 0xffff0000, v{src}")

def pv(a, base, acc, lo, hi):
    for j in range(3):
        for i in range(4):
            w = base + 4*j + i
            a.e(f"v_dot2c_f32_bf16 v{acc+8*j+2*i}, v{w}, v{lo}")
            a.e(f"v_dot2c_f32_bf16 v{acc+8*j+2*i+1}, v{w}, v{hi}")

def tagcheck(a, P, t, dst):
    a.e(f"v_xor_b32 v{t}, v{P}, v{V_TAG8}")
    a.e(f"v_xor_b32 v{t+1}, v{P+1}, v{V_TAG8}")
    a.e(f"v_xor_b32 v{t+2}, v{P+2}, v{V_TAG8}")
    a.e(f"v_xor_b32 v{t+3}, v{P+3}, v{V_TAG8}")
    a.e(f"v_or3_b32 v{t}, v{t}, v{t+1}, v{t+2}")
    a.e(f"v_or_b32 v{t}, v{t}, v{t+3}")
    a.e(f"v_and_b32 v{t}, v{V_FF}, v{t}")
    a.e(f"v_cmp_ne_u32 {dst}, 0, v{t}")

def gen(opt):
    a = A()
    nt = " nt" if opt.nt else ""
    a.lines.append(f"; @launch grid=({opt.grid},1,1) block=(512,1,1) lds={L_SIZE}")
    a.lines.append('.amdgcn_target "amdgcn-amd-amdhsa--gfx950"')
    a.lines.append(".text")
    a.lines.append(f".globl {KNAME}")
    a.lines.append(".p2align 8")
    a.lines.append(f".type {KNAME},@function")
    a.label(KNAME)
    a.e("s_cmp_ge_u32 s2, 256")
    a.e("s_cbranch_scc1 L_end")
    a.e("s_load_dwordx16 s[4:19], s[0:1], 0")
    stamp(a, opt, 0)
    if opt.map == 1:
        a.e(f"s_lshr_b32 s{S_H}, s2, 3")
        a.e(f"s_and_b32 s{S_I}, s2, 7")
    elif opt.map == 3:
        a.e(f"s_lshr_b32 s{S_H}, s2, 3")
        a.e(f"s_and_b32 s{S_T}, s2, 7")
        a.e(f"s_lshr_b32 s{S_T+1}, s{S_T}, 2")
        a.e(f"s_xor_b32 s{S_T+1}, s{S_T+1}, s{S_T}")
        a.e(f"s_and_b32 s{S_T+1}, s{S_T+1}, 1")
        a.e(f"s_lshl_b32 s{S_T+1}, s{S_T+1}, 2")
        a.e(f"s_lshr_b32 s{S_T}, s{S_T}, 1")
        a.e(f"s_add_u32 s{S_I}, s{S_T}, s{S_T+1}")
    elif opt.map == 2:
        a.e(f"s_lshr_b32 s{S_H}, s2, 3")
        a.e(f"s_and_b32 s{S_T}, s2, 7")
        a.e(f"s_bcnt1_i32_b32 s{S_T+1}, s{S_T}")
        a.e(f"s_and_b32 s{S_T+1}, s{S_T+1}, 1")
        a.e(f"s_lshl_b32 s{S_T+1}, s{S_T+1}, 2")
        a.e(f"s_lshr_b32 s{S_T}, s{S_T}, 1")
        a.e(f"s_add_u32 s{S_I}, s{S_T}, s{S_T+1}")
    else:
        a.e(f"s_and_b32 s{S_T}, s2, 7")
        a.e(f"s_lshr_b32 s{S_T+1}, s2, 3")
        a.e(f"s_and_b32 s{S_T+2}, s{S_T+1}, 3")
        a.e(f"s_lshl_b32 s{S_T+2}, s{S_T+2}, 3")
        a.e(f"s_add_u32 s{S_H}, s{S_T}, s{S_T+2}")
        a.e(f"s_lshr_b32 s{S_I}, s{S_T+1}, 2")
    a.e(f"s_lshr_b32 s{S_B}, s{S_I}, 2")
    a.e(f"s_lshl_b32 s{S_REC}, s{S_H}, 3")
    a.e(f"s_add_u32 s{S_REC}, s{S_REC}, s{S_I}")
    a.e(f"s_lshr_b32 s{S_RQ}, s{S_I}, 1")
    a.e(f"s_and_b32 s{S_CH}, s{S_I}, 1")
    a.e(f"v_and_b32 v{V_LANE}, 63, v{V_TID}")
    a.e(f"v_lshrrev_b32 v{V_T0}, 6, v{V_TID}")
    a.e(f"v_lshrrev_b32 v{V_T1}, 3, v{V_LANE}")
    a.e(f"v_and_b32 v{V_T2}, 7, v{V_LANE}")
    a.e(f"v_readfirstlane_b32 s{S_W}, v{V_T0}")
    a.e(f"v_lshlrev_b32 v{V_T2}, 4, v{V_T2}")
    a.e(f"v_mul_u32_u24 v{V_OFFKV}, 384, v{V_T1}")
    a.e(f"v_add_u32 v{V_OFFKV}, v{V_OFFKV}, v{V_T2}")
    a.e(f"v_mul_u32_u24 v{V_OFFW}, {10*12288}, v{V_T1}")
    a.e(f"v_add_u32 v{V_OFFW}, v{V_OFFW}, v{V_T2}")
    a.e(f"v_mul_u32_u24 v{V_T0}, 20, v{V_T1}")
    a.e(f"v_mov_b32 v{V_T1}, 0")
    a.e(f"v_lshlrev_b32 v{V_T2}, 2, v{V_LANE}")
    a.e("s_mov_b64 exec, 0xffff")
    a.e(f"ds_write_b32 v{V_T2}, v{V_T1} offset:{L_FLAG}")
    a.e("s_mov_b64 exec, -1")
    if not opt.rot:
        for g in range(16):
            a.e(f"s_mov_b32 s{S_GOFF+g}, {3072*g}")
    for g in range(10):
        a.e(f"s_mov_b32 s{S_WOFF+g}, {12288*g}")
    if opt.rot:
        a.e(f"s_sub_u32 s{S_T}, s{S_W}, 1")
        a.e(f"s_cmp_lt_u32 s{S_T}, 3")
        a.e(f"s_cselect_b32 s{S_T+1}, {NSA-1}, {NSB-1}")
        a.e(f"s_mul_i32 s{S_T+2}, s{S_H}, {opt.rot}")
        a.e(f"s_lshr_b32 s{S_T+3}, s{S_I}, 2")
        a.e(f"s_mul_i32 s{S_T+3}, s{S_T+3}, 5")
        a.e(f"s_add_u32 s{S_T+2}, s{S_T+2}, s{S_T+3}")
        for g in range(16):
            a.e(f"s_add_u32 s{S_T}, s{S_T+2}, {g}")
            a.e(f"s_and_b32 s{S_T}, s{S_T}, s{S_T+1}")
            a.e(f"s_mul_i32 s{S_GOFF+g}, s{S_T}, 3072")
    a.e(f"v_mov_b32 v{V_OFFD}, v{V_OFFKV}")
    a.e(f"s_sub_u32 s{S_T}, s{S_W}, 1")
    a.e(f"s_mul_i32 s{S_T}, s{S_T}, {8*NSA*384}")
    a.e(f"s_sub_u32 s{S_T+1}, s{S_W}, 3")
    a.e(f"s_max_i32 s{S_T+1}, s{S_T+1}, 0")
    a.e(f"s_mul_i32 s{S_T+1}, s{S_T+1}, {8*NSB*384}")
    a.e(f"s_add_u32 s{S_T+1}, s{S_T+1}, {3*8*NSA*384}")
    a.e(f"s_sub_u32 s{S_T+2}, s{S_W}, 1")
    a.e(f"s_cmp_lt_u32 s{S_T+2}, 3")
    a.e(f"s_cselect_b32 s{S_T}, s{S_T}, s{S_T+1}")
    a.e(f"s_and_b32 s{S_T+1}, s{S_I}, 3")
    a.e(f"s_mul_i32 s{S_T+1}, s{S_T+1}, {STAT_ROWS*384}")
    a.e(f"s_add_u32 s{S_T}, s{S_T}, s{S_T+1}")
    a.e(f"v_add_u32 v{V_OFFKV}, s{S_T}, v{V_OFFKV}")
    a.e(f"s_mul_i32 s{S_T+2}, s{S_I}, 160")
    a.e(f"v_add_u32 v{V_T0}, s{S_T+2}, v{V_T0}")
    a.e(f"s_lshl_b32 s{S_T}, s{S_B}, 5")
    a.e(f"s_add_u32 s{S_T}, s{S_T}, s{S_H}")
    a.e(f"s_mul_i32 s{S_CNT}, s{S_T}, {opt.cstride}")
    a.e(f"s_add_u32 s{S_CNT}, s{S_CNT}, {WS_CNT}")
    a.e(f"s_mul_i32 s{S_T}, s{S_T}, 6291456")
    a.e(f"s_add_u32 s{S_T}, s{S_T}, 4718592")
    a.e(f"s_mul_i32 s{S_T+1}, s{S_H}, 384")
    a.e(f"s_mul_i32 s{S_T+3}, s{S_I}, {80*12288}")
    a.e(f"s_add_u32 s{S_T+1}, s{S_T+1}, s{S_T+3}")
    a.e(f"s_mul_i32 s{S_T+2}, s{S_H}, {192*1280}")
    a.e(f"s_mul_i32 s{S_T+3}, s{S_RQ}, {48*1280}")
    a.e(f"s_add_u32 s{S_T+2}, s{S_T+2}, s{S_T+3}")
    a.e(f"s_mul_i32 s{S_T+3}, s{S_CH}, 640")
    a.e(f"s_add_u32 s{S_T+2}, s{S_T+2}, s{S_T+3}")
    a.e("s_waitcnt lgkmcnt(0)")
    def srd(R, P, off_s, nbytes):
        if off_s is None:
            a.e(f"s_mov_b32 s{R}, s{P}")
            a.e(f"s_mov_b32 s{R+1}, s{P+1}")
        else:
            a.e(f"s_add_u32 s{R}, s{P}, s{off_s}")
            a.e(f"s_addc_u32 s{R+1}, s{P+1}, 0")
        a.e(f"s_mov_b32 s{R+2}, {nbytes}")
        a.e(f"s_mov_b32 s{R+3}, 0x00020000")
    srd(R_K, S_K, S_T, 4096*384)
    def rest_srds():
        srd(R_V, S_V, S_T, 4096*384)
        srd(R_WO, S_WO, S_T+2, 47*1280+640)
        srd(R_OUT, S_OUT, None, 2560)

    def load_grp(kind, g, sl, thr=None):
        R, voff, soff, fl = {"K": (R_K, V_OFFKV, S_GOFF + g, nt), "V": (R_V, V_OFFKV, S_GOFF + g, nt),
                             "W": (R_WQ, V_OFFW, S_WOFF + g, nt)}[kind]
        for j in range(3):
            if thr is None: thr = (kind == "K" and g < opt.tgroups)
            if opt.fine and thr: a.throttle(opt.fine, 1)
            a.vmem(f"buffer_load_dwordx4 {vr(slot(sl)+4*j,4)}, v{voff}, {sr(R,4)}, s{soff} offen offset:{128*j}{fl}", (kind, g))

    a.e(f"s_cmp_eq_u32 s{S_W}, 0")
    a.e("s_cbranch_scc0 L_main")
    a.c("wave 0: q projection partial + exchange")
    srd(R_WS, S_WS, None, WS_SIZE)
    srd(R_X, S_X, None, 2560)
    srd(R_WQ, S_WQ, S_T+1, 79*12288+384)
    if opt.noq:
        a.e(f"s_and_b32 s{S_T+4}, s{S_I}, 3")
        a.e(f"s_cmp_eq_u32 s{S_T+4}, 0")
        a.e("s_cbranch_scc0 L_noinit0")
        a.e(f"v_mov_b32 v{V_T1}, 0")
        a.e("s_mov_b64 exec, 1")
        a.e(f"buffer_store_dword v{V_T1}, v{V_T1}, {sr(R_WS,4)}, s{S_CNT} offen sc1")
        a.e("s_mov_b64 exec, -1")
        a.e("s_waitcnt vmcnt(0)")
        a.label("L_noinit0")
        a.e(f"s_sleep {opt.noq}")
        a.e(f"v_mov_b32 v{V_T0}, 0")
        a.e(f"v_mov_b32 v{V_T2}, 1")
        a.e("s_mov_b64 exec, 1")
        a.e(f"ds_write_b32 v{V_T0}, v{V_T2} offset:{L_FLAG}")
        a.e("s_mov_b64 exec, -1")
        stamp(a, opt, 1)
        stamp(a, opt, 2)
        a.e("s_branch L_mainB")
    VE = slot(14)
    a.e(f"v_mov_b32 v{VE+1}, 0")
    a.vmem(f"buffer_load_dword v{VE}, v{VE+1}, {sr(R_WS,4)}, {WS_EPOCH} offen sc1", "x")
    X1 = slot(10)
    F1 = slot(10) + 6
    ACC1 = slot(11)
    a.vmem(f"buffer_load_dwordx4 {vr(slot(13),4)}, v{V_T0}, {sr(R_X,4)}, 0 offen", "x")
    X0 = slot(13)
    a.vmem(f"buffer_load_dword v{X0+4}, v{V_T0}, {sr(R_X,4)}, 0 offen offset:16", "x")
    a.vmem(f"buffer_load_dwordx4 {vr(X1,4)}, v{V_T0}, {sr(R_X,4)}, 0 offen offset:1280", "x")
    a.vmem(f"buffer_load_dword v{X1+4}, v{V_T0}, {sr(R_X,4)}, 0 offen offset:1296", "x")
    a.e(f"s_and_b32 s{S_T+4}, s{S_I}, 3")
    a.e(f"s_cmp_eq_u32 s{S_T+4}, 0")
    a.e("s_cbranch_scc0 L_noinit")
    a.e(f"v_mov_b32 v{V_T1}, 0")
    a.e("s_mov_b64 exec, 1")
    a.e(f"buffer_store_dword v{V_T1}, v{V_T1}, {sr(R_WS,4)}, s{S_CNT} offen sc1")
    a.e("s_mov_b64 exec, -1")
    a.label("L_noinit")
    for g in range(10):
        load_grp("W", g, g)
        if g == 1:
            rest_srds()
            a.e("s_barrier")
    for r in range(24):
        a.e(f"v_mov_b32 v{V_ACC+r}, 0")
        a.e(f"v_mov_b32 v{ACC1+r}, 0")
    for g in range(10):
        a.wait_vm(("W", g))
        forms(a, X0 + g//2, g % 2, V_T0, V_T1)
        forms(a, X1 + g//2, g % 2, F1, F1+1)
        pv(a, slot(g), V_ACC, V_T0, V_T1)
        pv(a, slot(g), ACC1, F1, F1+1)
    reduce24(a, V_ACC)
    reduce24(a, ACC1)
    a.e(f"v_readfirstlane_b32 s{S_EPOCH}, v{VE}")
    a.nop(4)
    a.e(f"s_add_u32 s{S_TAG}, s{S_EPOCH}, 1")
    G0, G1 = V_Q, V_Q + 4
    for j in range(3):
        a.e(f"v_mov_b32 v{G0+j}, v{V_ACC+8*j}")
        a.e(f"v_mov_b32 v{G1+j}, v{ACC1+8*j}")
    a.e(f"v_mov_b32 v{G0+3}, s{S_TAG}")
    a.e(f"v_mov_b32 v{G1+3}, s{S_TAG}")
    a.e(f"v_lshlrev_b32 v{V_T1}, 4, v{V_LANE}")
    a.e(f"s_lshl_b32 s{S_T}, s{S_H}, 14")
    a.e(f"s_add_u32 s{S_T}, s{S_T}, {WS_QX}")
    a.e(f"s_lshl_b32 s{S_T+1}, s{S_I}, 10")
    a.e(f"s_add_u32 s{S_T+1}, s{S_T+1}, s{S_T}")
    a.e(f"s_add_u32 s{S_T+2}, s{S_T+1}, 8192")
    a.e(f"buffer_store_dwordx4 {vr(G0,4)}, v{V_T1}, {sr(R_WS,4)}, s{S_T+1} offen sc1")
    a.e(f"buffer_store_dwordx4 {vr(G1,4)}, v{V_T1}, {sr(R_WS,4)}, s{S_T+2} offen sc1")
    if opt.ts in (1, 8): stamp(a, opt, 1)
    a.e(f"s_lshl_b32 s{S_T+1}, s{S_B}, 13")
    a.e(f"s_add_u32 s{S_T}, s{S_T}, s{S_T+1}")
    a.e(f"s_add_u32 s{S_T+1}, s{S_T}, 4096")
    GA = slot(0)
    QM = S_GOFF
    QM = S_WOFF
    qmask = [68, 70, 72, 74, 76, 84, 86, 88]
    for i in range(8):
        a.e(f"s_mov_b64 s[{qmask[i]}:{qmask[i]+1}], -1")
    a.e(f"s_mov_b32 s{S_SPIN}, 0")
    if opt.qdelay: a.e(f"s_sleep {opt.qdelay}")
    a.label("L_qpoll")
    for i in range(8):
        a.e(f"s_mov_b64 exec, s[{qmask[i]}:{qmask[i]+1}]")
        a.e(f"s_cbranch_execz L_qs{i}")
        a.e(f"buffer_load_dwordx4 {vr(GA+4*i,4)}, v{V_T1}, {sr(R_WS,4)}, s{S_T + (i//4)} offen offset:{1024*(i%4)} sc1")
        a.label(f"L_qs{i}")
    a.e("s_mov_b64 exec, -1")
    a.e("s_waitcnt vmcnt(0)")
    for i in range(8):
        a.e(f"v_cmp_ne_u32 s[{qmask[i]}:{qmask[i]+1}], s{S_TAG}, v{GA+4*i+3}")
    a.nop(5)
    for i in range(8):
        group4(a, qmask[i], "vcc")
    a.e(f"s_or_b64 vcc, s[{qmask[0]}:{qmask[0]+1}], s[{qmask[1]}:{qmask[1]+1}]")
    for i in range(2, 8):
        a.e(f"s_or_b64 vcc, vcc, s[{qmask[i]}:{qmask[i]+1}]")
    a.e("s_cbranch_scc0 L_qok")
    a.e(f"s_add_u32 s{S_SPIN}, s{S_SPIN}, 1")
    a.e(f"s_cmp_gt_u32 s{S_SPIN}, {SPINMAX}")
    a.e("s_cbranch_scc1 L_qok")
    if opt.qsleep: a.e(f"s_sleep {opt.qsleep}")
    a.e("s_branch L_qpoll")
    a.label("L_qok")
    if opt.ts in (1, 8): stamp(a, opt, 2)
    for j in range(3):
        a.e(f"v_add_f32 v{GA+j}, v{GA+j}, v{GA+4+j}")
        a.e(f"v_add_f32 v{GA+8+j}, v{GA+8+j}, v{GA+12+j}")
        a.e(f"v_add_f32 v{GA+16+j}, v{GA+16+j}, v{GA+20+j}")
        a.e(f"v_add_f32 v{GA+24+j}, v{GA+24+j}, v{GA+28+j}")
    for j in range(3):
        a.e(f"v_add_f32 v{GA+j}, v{GA+j}, v{GA+8+j}")
        a.e(f"v_add_f32 v{GA+16+j}, v{GA+16+j}, v{GA+24+j}")
    for j in range(3):
        a.e(f"v_add_f32 v{GA+j}, v{GA+j}, v{GA+16+j}")
    for j in range(3):
        a.e(f"v_cvt_pk_bf16_f32 v{GA+j}, v{GA+j}, v{GA+j}")
    a.e(f"v_and_b32 v{V_T0}, 7, v{V_LANE}")
    a.e(f"v_lshlrev_b32 v{V_T0}, 4, v{V_T0}")
    a.e(f"v_lshrrev_b32 v{V_T2}, 3, v{V_LANE}")
    a.e(f"v_lshl_add_u32 v{V_T0}, v{V_T2}, 1, v{V_T0}")
    for j in range(3):
        a.e(f"ds_write_b16 v{V_T0}, v{GA+j} offset:{L_QBF+128*j}")
    a.e(f"v_mov_b32 v{V_T0}, 0")
    a.e(f"v_mov_b32 v{V_T1}, s{S_TAG}")
    a.e(f"v_mov_b32 v{V_T2}, 1")
    a.e("s_mov_b64 exec, 1")
    a.e(f"ds_write_b32 v{V_T0}, v{V_T1} offset:{L_TAG}")
    a.e("s_waitcnt lgkmcnt(0)")
    a.e(f"ds_write_b32 v{V_T0}, v{V_T2} offset:{L_FLAG}")
    a.e("s_mov_b64 exec, -1")
    a.vm = []
    def pre_q(NS, sfx, dyn=False):
        a.vm = [("K", 0)]*3
        for g in range(1, NS):
            load_grp("K", g, g)
        if dyn:
            for g in range(NS - 4):
                load_grp("V", g, NS + g, thr=(NS + g < opt.tgroups))
        a.e(f"v_and_b32 v{V_T0}, 7, v{V_LANE}")
        a.e(f"v_lshlrev_b32 v{V_T1}, 5, v{V_T0}")
        a.e(f"v_lshrrev_b32 v{V_T2}, 3, v{V_LANE}")
        a.e(f"v_lshl_add_u32 v{V_T1}, v{V_T2}, 2, v{V_T1}")
        a.e(f"s_lshl_b32 s{S_T}, s{S_W}, 10")
        a.e(f"v_add_u32 v{V_LDSP}, s{S_T}, v{V_T1}")
        for g in range(NS):
            a.e(f"v_mov_b32 v{V_S+g}, 0")
        if opt.ts in (1, 8):
            a.e(f"s_cmp_eq_u32 s{S_W}, 0")
            a.e(f"s_cbranch_scc1 L_nost0{sfx}")
            stamp(a, opt, 1)
            a.label(f"L_nost0{sfx}")
        a.e(f"v_mov_b32 v{V_T2}, 0")
        a.e(f"s_mov_b32 s{S_SPIN}, 0")
        a.label(f"L_qwait{sfx}")
        a.e(f"ds_read_b32 v{V_T1}, v{V_T2} offset:{L_FLAG}")
        a.e("s_waitcnt lgkmcnt(0)")
        a.e(f"v_cmp_ne_u32 vcc, 1, v{V_T1}")
        a.nop(5)
        a.e("s_cmp_eq_u64 vcc, 0")
        a.e(f"s_cbranch_scc1 L_qready{sfx}")
        a.e(f"s_add_u32 s{S_SPIN}, s{S_SPIN}, 1")
        a.e(f"s_cmp_gt_u32 s{S_SPIN}, {SPINMAX*16}")
        a.e(f"s_cbranch_scc1 L_qready{sfx}")
        a.e("s_sleep 4")
        a.e(f"s_branch L_qwait{sfx}")
        a.label(f"L_qready{sfx}")
        a.e(f"v_lshlrev_b32 v{V_T0}, 4, v{V_T0}")
        for j in range(3):
            a.e(f"ds_read_b128 {vr(V_Q+4*j,4)}, v{V_T0} offset:{L_QBF+128*j}")
        a.e(f"ds_read_b32 v{V_TAG8}, v{V_T2} offset:{L_TAG}")
        a.e(f"v_mov_b32 v{V_FF}, 0xff")
        a.e("s_waitcnt lgkmcnt(0)")
        a.e(f"v_readfirstlane_b32 s{S_TAG}, v{V_TAG8}")
        a.e(f"v_and_b32 v{V_TAG8}, 0xff, v{V_TAG8}")
        if dyn:
            atomic()
            for g in range(NS - 4, NS):
                load_grp("V", g, NS + g)
            a.e(f"s_lshl_b32 s{S_T}, s{S_W}, 2")
            a.e(f"v_mov_b32 v{V_T1}, s{S_T}")
            a.e(f"v_mov_b32 v{V_T2}, 1")
            a.e("s_mov_b64 exec, 1")
            a.e(f"ds_write_b32 v{V_T1}, v{V_T2} offset:{L_SFLAG-16}")
            a.e("s_mov_b64 exec, -1")
        a.e("s_waitcnt lgkmcnt(0)")
        if opt.ts in (1, 8):
            a.e(f"s_cmp_eq_u32 s{S_W}, 0")
            a.e(f"s_cbranch_scc1 L_nost{sfx}")
            stamp(a, opt, 2)
            a.label(f"L_nost{sfx}")

    V_IDX = V_T2 + 0
    V_IDX = V_S + 15
    def atomic():
        a.e(f"v_mov_b32 v{V_IDX}, 1")
        a.e(f"v_mov_b32 v{V_IDX-1}, 0")
        a.e("s_mov_b64 exec, 1")
        a.vmem(f"buffer_atomic_add v{V_IDX}, v{V_IDX-1}, {sr(R_WS,4)}, s{S_CNT} offen sc0 sc1", "atom")
        a.e("s_mov_b64 exec, -1")

    def k_phase(NS, dyn):
        a.c("K phase")
        for g in range(NS):
            a.wait_vm(("K", g))
            for j in range(3):
                for i in range(4):
                    a.e(f"v_dot2c_f32_bf16 v{V_S+g}, v{slot(g)+4*j+i}, v{V_Q+4*j+i}")
            if not dyn:
                load_grp("V", g, g)

    def round_scores(regs, T):
        n = len(regs) // 2
        for k in range(n):
            a.e(f"v_cvt_pk_bf16_f32 v{T+k}, v{regs[2*k]}, v{regs[2*k+1]}")
        for k in range(n):
            a.e(f"v_lshlrev_b32 v{regs[2*k]}, 16, v{T+k}")
            a.e(f"v_and_b32 v{regs[2*k+1]}, 0xffff0000, v{T+k}")
        for r in regs:
            a.e(f"v_mul_f32 v{r}, 0x{SCALE:08x}, v{r}")
        for k in range(n):
            a.e(f"v_cvt_pk_bf16_f32 v{T+k}, v{regs[2*k]}, v{regs[2*k+1]}")
        for k in range(n):
            a.e(f"v_lshlrev_b32 v{regs[2*k]}, 16, v{T+k}")
            a.e(f"v_and_b32 v{regs[2*k+1]}, 0xffff0000, v{T+k}")

    def finish_l():
        a.e(f"v_mov_b32 v{V_T2}, v{V_L}")
        allred_hi(a, "v_add_f32", V_T2, V_T0)
        a.e(f"v_mul_f32 v{V_T1}, 0x{LOG2E:08x}, v{V_MC}")
        a.e("s_mov_b64 exec, 1")
        a.e(f"ds_write_b32 v{AD_LW}, v{V_T2} offset:{L_PART+768}")
        a.e(f"ds_write_b32 v{AD_MW}, v{V_T1} offset:{L_M}")
        a.e("s_mov_b64 exec, -1")

    def tail_prep():
        c16, g16 = V_T0, V_T1
        a.e(f"v_and_b32 v{c16}, 15, v{V_LANE}")
        a.e(f"v_lshrrev_b32 v{g16}, 4, v{V_LANE}")
        a.e(f"v_mul_u32_u24 v{AD_FIN}, 192, v{g16}")
        a.e(f"v_lshl_add_u32 v{AD_FIN}, v{c16}, 4, v{AD_FIN}")
        a.e(f"v_mov_b32 v{V_T2}, 768")
        a.e(f"v_cmp_gt_u32 vcc, 12, v{c16}")
        a.e(f"v_lshlrev_b32 v{AD_L16}, 4, v{V_LANE}")
        a.e(f"v_lshlrev_b32 v{AD_H1}, 10, v{g16}")
        a.e(f"v_cndmask_b32 v{AD_FIN}, v{V_T2}, v{AD_FIN}, vcc")
        a.e(f"v_lshl_add_u32 v{AD_H1}, v{c16}, 4, v{AD_H1}")
        a.e(f"v_lshlrev_b32 v{AD_OBW}, 3, v{c16}")
        a.e(f"v_lshl_add_u32 v{AD_OBW}, v{g16}, 1, v{AD_OBW}")
        a.e(f"s_lshl_b32 s{S_T}, s{S_W}, 7")
        a.e(f"v_add_u32 v{AD_OBW}, s{S_T}, v{AD_OBW}")
        a.e(f"v_and_b32 v{V_T2}, 1, v{V_LANE}")
        a.e(f"v_lshlrev_b32 v{AD_B}, 7, v{V_T2}")
        a.e(f"v_lshl_add_u32 v{AD_B}, v{g16}, 3, v{AD_B}")
        a.e(f"v_mul_u32_u24 v{AD_ST}, {40*8192}, v{V_T2}")
        a.e(f"v_lshl_add_u32 v{AD_ST}, v{g16}, 4, v{AD_ST}")
        a.e(f"v_lshlrev_b32 v{AD_TR}, 2, v{g16}")
        a.e(f"v_bfe_u32 v{V_T2}, v{V_LANE}, 2, 2")
        a.e(f"v_add_u32 v{AD_TR}, v{AD_TR}, v{V_T2}")
        a.e(f"v_mul_u32_u24 v{AD_TR}, 640, v{AD_TR}")
        a.e(f"v_and_b32 v{V_T2}, 3, v{V_LANE}")
        a.e(f"v_lshl_add_u32 v{AD_TR}, v{V_T2}, 3, v{AD_TR}")
        a.e(f"s_sub_u32 s{S_T}, s{S_W}, 2")
        a.e(f"s_lshl_b32 s{S_T}, s{S_T}, 5")
        a.e(f"v_add_u32 v{AD_TR}, s{S_T}, v{AD_TR}")
        a.e(f"v_mov_b32 v{AD_ZERO}, 0")
        a.e(f"s_lshl_b32 s{S_T}, s{S_W}, 10")
        a.e(f"v_mov_b32 v{AD_LW}, s{S_T}")
        a.e(f"s_lshl_b32 s{S_T}, s{S_W}, 2")
        a.e(f"v_mov_b32 v{AD_MW}, s{S_T}")
        a.e(f"s_sub_u32 s{S_T}, s{S_W}, 2")
        a.e(f"s_lshl_b32 s{SX_DMA}, s{S_T}, 10")
        a.e(f"s_lshl_b32 s{S_T}, s{S_T}, 6")
        for k in range(5):
            t = AD_DMA + k
            a.e(f"v_add_u32 v{t}, s{S_T}, v{V_LANE}")
            if k: a.e(f"v_add_u32 v{t}, {384*k}, v{t}")
            a.e(f"v_mul_u32_u24 v{V_T2}, 52429, v{t}")
            a.e(f"v_lshrrev_b32 v{V_T2}, 21, v{V_T2}")
            a.e(f"v_mul_u32_u24 v{V_T2}, 640, v{V_T2}")
            a.e(f"v_lshl_add_u32 v{t}, v{t}, 4, v{V_T2}")
        a.e(f"v_and_b32 v{V_T2}, 3, v{V_LANE}")
        a.e(f"v_lshlrev_b32 v{AD_FW}, 4, v{V_T2}")
        a.e(f"v_lshl_add_u32 v{AD_FW}, v{g16}, 2, v{AD_FW}")
        a.e(f"s_lshl_b32 s{S_T}, s{S_W}, 6")
        a.e(f"v_add_u32 v{AD_FW}, s{S_T}, v{AD_FW}")
        a.e(f"s_lshl_b32 s{SX_REC}, s{S_REC}, 10")
        a.e(f"s_add_u32 s{SX_REC}, s{SX_REC}, {WS_H1}")
        a.e(f"s_lshl_b32 s{SX_H1}, s{S_H}, 3")
        a.e(f"s_lshl_b32 s{S_T}, s{S_W}, 2")
        a.e(f"s_add_u32 s{SX_H1}, s{SX_H1}, s{S_T}")
        a.e(f"s_lshl_b32 s{SX_H1}, s{SX_H1}, 10")
        a.e(f"s_lshl_b32 s{S_T}, s{S_RQ}, 8")
        a.e(f"s_add_u32 s{SX_H1}, s{SX_H1}, s{S_T}")
        a.e(f"s_add_u32 s{SX_H1}, s{SX_H1}, {WS_H1}")
        a.e(f"s_mul_i32 s{SX_ST}, s{S_CH}, 20")
        a.e(f"s_add_u32 s{SX_ST}, s{SX_ST}, s{S_W}")
        a.e(f"s_sub_u32 s{SX_ST}, s{SX_ST}, 2")
        a.e(f"s_lshl_b32 s{SX_ST}, s{SX_ST}, 13")
        a.e(f"s_lshl_b32 s{S_T}, s{S_H}, 2")
        a.e(f"s_add_u32 s{S_T}, s{S_T}, s{S_RQ}")
        a.e(f"s_lshl_b32 s{S_T}, s{S_T}, 6")
        a.e(f"s_add_u32 s{SX_ST}, s{SX_ST}, s{S_T}")
        a.e(f"s_add_u32 s{SX_ST}, s{SX_ST}, {WS_H2}")
        a.e(f"s_add_u32 s{SX_ST+1}, s{SX_ST}, 49152")
        a.e(f"s_add_u32 s{SX_ST+2}, s{SX_ST}, 98304")
        a.e(f"s_add_u32 s{SX_ST3}, s{SX_ST}, 147456")
        a.e(f"s_lshl_b32 s{SX_H2}, s{S_REC}, 13")
        a.e(f"s_lshl_b32 s{S_T}, s{S_W}, 10")
        a.e(f"s_add_u32 s{SX_H2}, s{SX_H2}, s{S_T}")
        a.e(f"s_add_u32 s{SX_H2}, s{SX_H2}, {WS_H2}")
        a.e(f"s_cmp_ge_u32 s{S_REC}, 40")
        a.e(f"s_cselect_b32 s{S_T}, 40, 0")
        a.e(f"s_cselect_b32 s{S_T+1}, 1280, 0")
        a.e(f"s_sub_u32 s{SX_OUT}, s{S_REC}, s{S_T}")
        a.e(f"s_lshl_b32 s{SX_OUT}, s{SX_OUT}, 5")
        a.e(f"s_add_u32 s{SX_OUT}, s{SX_OUT}, s{S_T+1}")

    dmac = [0]
    def wo_dma():
        dmac[0] += 1
        u = dmac[0]
        a.e(f"s_cmp_lt_u32 s{S_W}, 2")
        a.e(f"s_cbranch_scc1 L_nodma{u}")
        for k in range(5):
            a.e(f"s_add_u32 m0, s{SX_DMA}, {L_WO + 6144*k}")
            a.e("s_nop 0")
            a.e(f"buffer_load_dwordx4 v{AD_DMA+k}, {sr(R_WO,4)}, 0 offen{nt} lds")
        a.label(f"L_nodma{u}")

    def softmax(NS):
        a.c("softmax")
        a.nop(3)
        for ctl in ["quad_perm:[1,0,3,2]", "quad_perm:[2,3,0,1]", "row_half_mirror"]:
            for g in range(NS):
                a.e(f"v_add_f32_dpp v{V_S+g}, v{V_S+g}, v{V_S+g} {ctl} row_mask:0xf bank_mask:0xf")
        round_scores([V_S+g for g in range(NS)], V_ACC)
        M = V_MC
        a.e(f"v_max3_f32 v{M}, v{V_S}, v{V_S+1}, v{V_S+2}")
        k = 3
        while k + 1 < NS:
            a.e(f"v_max3_f32 v{M}, v{M}, v{V_S+k}, v{V_S+k+1}")
            k += 2
        if k < NS:
            a.e(f"v_max_f32 v{M}, v{M}, v{V_S+k}")
        allred_hi(a, "v_max_f32", M, V_T0)
        for g in range(NS):
            a.e(f"v_sub_f32 v{V_S+g}, v{V_S+g}, v{M}")
        for g in range(NS):
            a.e(f"v_mul_f32 v{V_S+g}, 0x{LOG2E:08x}, v{V_S+g}")
        for g in range(NS):
            a.e(f"v_exp_f32 v{V_S+g}, v{V_S+g}")
        a.e("s_nop 0")
        a.e(f"v_add_f32 v{V_L}, v{V_S}, v{V_S+1}")
        for g in range(2, NS):
            a.e(f"v_add_f32 v{V_L}, v{V_L}, v{V_S+g}")
        for k in range(NS//2):
            a.e(f"v_cvt_pk_bf16_f32 v{V_S+k}, v{V_S+2*k}, v{V_S+2*k+1}")
        for r in range(24):
            a.e(f"v_mov_b32 v{V_ACC+r}, 0")

    def v_phase(g0, g1, base=0):
        for g in range(g0, g1):
            a.wait_vm(("V", g))
            forms(a, V_S + g//2, g % 2, V_T0, V_T1)
            pv(a, slot(base + g), V_ACC, V_T0, V_T1)

    S_SOF = S_T + 2
    def issue_task(buf, big):
        if opt.ts: a.e("s_add_u32 s77, s77, 1")
        if big:
            a.e(f"s_mul_i32 s{S_SOF}, s{S_T}, 6144")
            a.e(f"s_add_u32 s{S_SOF}, s{S_SOF}, {POOL_ROW0*384}")
            a.e(f"s_add_u32 s{S_SOF+1}, s{S_SOF}, 3072")
        else:
            a.e(f"s_mul_i32 s{S_SOF}, s{S_T}, 3072")
            a.e(f"s_add_u32 s{S_SOF}, s{S_SOF}, {(POOL_ROW0 + 16*NT1 - 8*NT1)*384}")
        for (R, off) in [(R_K, 0), (R_V, 2)]:
            for gg in range(2 if big else 1):
                for j in range(3):
                    a.e(f"buffer_load_dwordx4 {vr(slot(buf+off+gg)+4*j,4)}, v{V_OFFD}, {sr(R,4)}, s{S_SOF+gg} offen offset:{128*j}{nt}")
        atomic()

    def read_idx(n_younger):
        a.e(f"s_waitcnt vmcnt({n_younger})")
        a.e(f"v_readfirstlane_b32 s{S_T}, v{V_IDX}")
        a.nop(4)

    def proc_k(buf, big, uid):
        s0, s1 = V_S, V_S + 1
        t = V_S + 2
        a.e(f"v_mov_b32 v{s0}, 0")
        a.e(f"v_mov_b32 v{s1}, 0")
        a.e(f"s_waitcnt vmcnt({7 if big else 4})")
        if big:
            for i in range(12):
                a.e(f"v_dot2c_f32_bf16 v{s0}, v{slot(buf)+i}, v{V_Q+i}")
                a.e(f"v_dot2c_f32_bf16 v{s1}, v{slot(buf+1)+i}, v{V_Q+i}")
            a.nop(3)
            for ctl in ["quad_perm:[1,0,3,2]", "quad_perm:[2,3,0,1]", "row_half_mirror"]:
                a.e(f"v_add_f32_dpp v{s0}, v{s0}, v{s0} {ctl} row_mask:0xf bank_mask:0xf")
                a.e(f"v_add_f32_dpp v{s1}, v{s1}, v{s1} {ctl} row_mask:0xf bank_mask:0xf")
                a.nop(1)
            round_scores([s0, s1], t)
            mn = t + 1
            a.e(f"v_max_f32 v{mn}, v{s0}, v{s1}")
        else:
            for i in range(6):
                a.e(f"v_dot2c_f32_bf16 v{s0}, v{slot(buf)+i}, v{V_Q+i}")
                a.e(f"v_dot2c_f32_bf16 v{s1}, v{slot(buf)+6+i}, v{V_Q+6+i}")
            a.nop(3)
            a.e(f"v_add_f32 v{s0}, v{s0}, v{s1}")
            for ctl in ["quad_perm:[1,0,3,2]", "quad_perm:[2,3,0,1]", "row_half_mirror"]:
                a.nop(2)
                a.e(f"v_add_f32_dpp v{s0}, v{s0}, v{s0} {ctl} row_mask:0xf bank_mask:0xf")
            a.e(f"v_cvt_pk_bf16_f32 v{t}, v{s0}, v{s0}")
            a.e(f"v_and_b32 v{s0}, 0xffff0000, v{t}")
            a.e(f"v_mul_f32 v{s0}, 0x{SCALE:08x}, v{s0}")
            a.e(f"v_cvt_pk_bf16_f32 v{t}, v{s0}, v{s0}")
            a.e(f"v_and_b32 v{s0}, 0xffff0000, v{t}")
            mn = t + 1
            a.e(f"v_mov_b32 v{mn}, v{s0}")
        allred_hi(a, "v_max_f32", mn, t + 2)
        a.e(f"v_cmp_gt_f32 vcc, v{mn}, v{V_MC}")
        a.nop(5)
        a.e("s_cmp_eq_u64 vcc, 0")
        a.e(f"s_cbranch_scc1 L_nors{uid}")
        a.e(f"v_sub_f32 v{t+2}, v{V_MC}, v{mn}")
        a.e(f"v_mul_f32 v{t+2}, 0x{LOG2E:08x}, v{t+2}")
        a.e(f"v_exp_f32 v{t+2}, v{t+2}")
        a.e(f"v_mov_b32 v{V_MC}, v{mn}")
        a.e(f"v_mul_f32 v{V_L}, v{t+2}, v{V_L}")
        for r in range(24):
            a.e(f"v_mul_f32 v{V_ACC+r}, v{t+2}, v{V_ACC+r}")
        a.label(f"L_nors{uid}")
        regs = [s0, s1] if big else [s0]
        for r in regs: a.e(f"v_sub_f32 v{r}, v{r}, v{V_MC}")
        for r in regs: a.e(f"v_mul_f32 v{r}, 0x{LOG2E:08x}, v{r}")
        for r in regs: a.e(f"v_exp_f32 v{r}, v{r}")
        a.e("s_nop 0")
        for r in regs: a.e(f"v_add_f32 v{V_L}, v{V_L}, v{r}")
        if big:
            a.e(f"v_cvt_pk_bf16_f32 v{t}, v{s0}, v{s1}")
            forms(a, t, 0, t+1, t+2)
            forms(a, t, 1, t+3, t+4)
        else:
            a.e(f"v_cvt_pk_bf16_f32 v{t}, v{s0}, v{s0}")
            forms(a, t, 0, t+1, t+2)

    def proc_v(buf, big):
        t = V_S + 2
        pv(a, slot(buf+2), V_ACC, t+1, t+2)
        if big: pv(a, slot(buf+3), V_ACC, t+3, t+4)

    def body(buf, other, big, name, oname):
        a.label(f"L_body{name}")
        proc_k(buf, big, name)
        finish_l()
        read_idx(0)
        a.e(f"s_cmp_lt_u32 s{S_T}, {NT1}")
        a.e(f"s_cbranch_scc1 L_nb{name}")
        a.e(f"s_cmp_lt_u32 s{S_T}, {NT1+NT2}")
        a.e(f"s_cbranch_scc1 L_ns{name}")
        if opt.ts == 1: stamp(a, opt, 2)
        wo_dma()
        proc_v(buf, big)
        a.e("s_branch L_vdone")
        a.label(f"L_nb{name}")
        issue_task(other, True)
        proc_v(buf, big)
        a.e(f"s_branch L_body{oname}B")
        a.label(f"L_ns{name}")
        issue_task(other, False)
        proc_v(buf, big)
        a.e(f"s_branch L_body{oname}S")

    def start_tasks(sfx):
        a.e(f"s_cmp_lt_u32 s{S_T}, {NT1}")
        a.e(f"s_cbranch_scc1 L_sb{sfx}")
        a.e(f"s_cmp_lt_u32 s{S_T}, {NT1+NT2}")
        a.e(f"s_cbranch_scc1 L_ss{sfx}")
        wo_dma()
        finish_l()
        a.e("s_branch L_vdone")
        a.label(f"L_sb{sfx}")
        issue_task(0, True)
        a.e("s_branch L_bodyXB")
        a.label(f"L_ss{sfx}")
        issue_task(0, False)
        a.e("s_branch L_bodyXS")

    a.vm = []
    load_grp("K", 0, 0, thr=False)
    a.e("s_branch L_mainB")
    a.label("L_main")
    a.vm = []
    load_grp("K", 0, 0, thr=False)
    rest_srds()
    srd(R_WS, S_WS, None, WS_SIZE)
    a.e("s_barrier")
    a.e(f"s_cmp_lt_u32 s{S_W}, 4")
    a.e("s_cbranch_scc0 L_mainB")
    if opt.ts: a.e("s_mov_b32 s77, 0")
    pre_q(NSA, "A")
    k_phase(NSA, False)
    softmax(NSA)
    v_phase(0, NSA)
    tail_prep()
    a.e(f"s_lshl_b32 s{S_T}, s{S_W}, 2")
    a.e(f"v_mov_b32 v{V_T2}, s{S_T}")
    a.e(f"s_mov_b32 s{S_SPIN}, 0")
    a.label("L_pwait")
    a.e(f"ds_read_b32 v{V_T1}, v{V_T2} offset:{L_SFLAG}")
    a.e("s_waitcnt lgkmcnt(0)")
    a.e(f"v_cmp_ne_u32 vcc, 1, v{V_T1}")
    a.nop(5)
    a.e("s_cmp_eq_u64 vcc, 0")
    a.e(f"s_cbranch_scc1 L_pok")
    a.e(f"s_add_u32 s{S_SPIN}, s{S_SPIN}, 1")
    a.e(f"s_cmp_gt_u32 s{S_SPIN}, {SPINMAX*16}")
    a.e(f"s_cbranch_scc1 L_pok")
    a.e("s_sleep 8")
    a.e(f"s_branch L_pwait")
    a.label("L_pok")
    a.vm = []
    atomic()
    read_idx(0)
    start_tasks("A")
    a.label("L_mainB")
    a.vm = []
    if opt.ts: a.e("s_mov_b32 s77, 0")
    pre_q(NSB, "B", True)
    k_phase(NSB, True)
    softmax(NSB)
    a.wait_vm("atom")
    a.e(f"v_readfirstlane_b32 s{S_T}, v{V_IDX}")
    a.nop(4)
    vm_save = list(a.vm)
    a.e(f"s_cmp_lt_u32 s{S_T}, {NT1}")
    a.e("s_cbranch_scc0 L_rare")
    issue_task(0, True)
    a.vm = vm_save + ["t"]*13
    v_phase(0, NSB, NSB)
    tail_prep()
    a.e("s_branch L_bodyXB")
    a.label("L_rare")
    a.vm = vm_save
    a.e(f"s_mov_b32 s{S_SOF+2}, s{S_T}")
    v_phase(0, NSB, NSB)
    tail_prep()
    a.e(f"s_mov_b32 s{S_T}, s{S_SOF+2}")
    start_tasks("B")
    body(0, 4, True, "XB", "Y")
    body(4, 0, True, "YB", "X")
    body(0, 4, False, "XS", "Y")
    body(4, 0, False, "YS", "X")
    a.label("L_vdone")
    a.vm = []
    if opt.ts in (1, 8): stamp(a, opt, 3)
    if opt.ts == 4: stamp(a, opt, 1)
    if opt.ts == 9: stamp(a, opt, 3)
    if opt.ts in (5, 6): stamp(a, opt, 1)
    reduce24(a, V_ACC)
    for j in range(3):
        a.e(f"ds_write_b32 v{V_LDSP}, v{V_ACC+8*j} offset:{L_PART+256*j}")
    a.e("s_waitcnt lgkmcnt(0)")
    a.e("s_barrier")
    if opt.ts == 5: stamp(a, opt, 2)
    a.e(f"s_cmp_eq_u32 s{S_W}, 0")
    a.e("s_cbranch_scc0 L_nopub")
    regs = [slot(8) + 4*k for k in range(8)]
    MW = V_S
    a.e(f"ds_read_b128 {vr(MW,4)}, v{AD_ZERO} offset:{L_M}")
    a.e(f"ds_read_b128 {vr(MW+4,4)}, v{AD_ZERO} offset:{L_M+16}")
    for w in range(8):
        a.e(f"ds_read_b128 {vr(regs[w],4)}, v{AD_FIN} offset:{L_PART+1024*w}")
    a.e("s_waitcnt lgkmcnt(8)")
    Mx = V_S + 8
    a.e(f"v_max3_f32 v{Mx}, v{MW}, v{MW+1}, v{MW+2}")
    a.e(f"v_max3_f32 v{Mx+1}, v{MW+3}, v{MW+4}, v{MW+5}")
    a.e(f"v_max3_f32 v{Mx}, v{Mx}, v{MW+6}, v{MW+7}")
    a.e(f"v_max_f32 v{Mx}, v{Mx}, v{Mx+1}")
    a.e(f"v_and_b32 v{Mx}, 0xffffff00, v{Mx}")
    for w in range(8):
        a.e(f"v_sub_f32 v{MW+w}, v{MW+w}, v{Mx}")
    for w in range(8):
        a.e(f"v_exp_f32 v{MW+w}, v{MW+w}")
    Y = V_S + 12
    Y2 = V_ACC
    for w in range(8):
        if w % 2 == 0: a.e(f"s_waitcnt lgkmcnt({6-w})")
        dst = Y if w % 2 == 0 else Y2
        for r in range(4):
            if w < 2:
                a.e(f"v_mul_f32 v{dst+r}, v{MW+w}, v{regs[w]+r}")
            else:
                a.e(f"v_fmac_f32 v{dst+r}, v{MW+w}, v{regs[w]+r}")
    for r in range(4):
        a.e(f"v_add_f32 v{Y+r}, v{Y+r}, v{Y2+r}")
    a.e("s_mov_b32 exec_lo, 0x10001000")
    a.e("s_mov_b32 exec_hi, 0x10001000")
    a.e(f"v_mov_b32 v{Y+1}, v{Mx}")
    a.e("s_mov_b64 exec, -1")
    for r in range(4):
        a.e(f"v_bfi_b32 v{Y+r}, v{V_FF}, v{V_TAG8}, v{Y+r}")
    a.e(f"buffer_store_dwordx4 {vr(Y,4)}, v{AD_L16}, {sr(R_WS,4)}, s{SX_REC} offen sc1")
    if opt.ts == 5: stamp(a, opt, 3)
    a.label("L_nopub")
    if not opt.notail: gen_tail(a, opt)
    if opt.ts:
        a.label("L_ts")
        if opt.ts in (1, 4, 6, 8, 9): stamp(a, opt, 4)
        a.e("s_waitcnt lgkmcnt(0)")
        if opt.ts == 9:
            a.e(f"s_cmp_eq_u32 s{S_W}, 0")
            a.e("s_cbranch_scc0 L_end")
            a.e(f"s_cmp_lt_u32 s{S_REC}, 80")
            a.e("s_cbranch_scc0 L_end")
            a.e(f"s_mov_b32 s{R_X}, s{S_DBG}")
            a.e(f"s_mov_b32 s{R_X+1}, s{S_DBG+1}")
            a.e(f"s_mov_b32 s{R_X+2}, 256")
            a.e(f"s_mov_b32 s{R_X+3}, 0x00020000")
            a.e(f"v_mov_b32 v{V_T0}, 0")
            a.e("s_mov_b64 exec, 1")
            a.e(f"v_mov_b32 v{V_T1}, s{TS_PAIRS[0]}")
            a.e(f"v_not_b32 v{V_T1}, v{V_T1}")
            a.e(f"v_mov_b32 v{V_T2}, s{TS_PAIRS[4]}")
            a.e(f"v_mov_b32 v{V_ACC}, s{TS_PAIRS[3]}")
            a.e(f"v_mov_b32 v{V_ACC+1}, s{TS_PAIRS[2]}")
            a.e(f"buffer_atomic_umax v{V_T1}, v{V_T0}, {sr(R_X,4)}, 0 offen sc1")
            a.e(f"buffer_atomic_umax v{V_T2}, v{V_T0}, {sr(R_X,4)}, 0 offen offset:4 sc1")
            a.e(f"buffer_atomic_umax v{V_ACC}, v{V_T0}, {sr(R_X,4)}, 0 offen offset:8 sc1")
            a.e(f"buffer_atomic_umax v{V_ACC+1}, v{V_T0}, {sr(R_X,4)}, 0 offen offset:12 sc1")
            a.e("s_branch L_end")
        if opt.ts == 8:
            a.e(f"s_mov_b32 s{R_X}, s{S_DBG}")
            a.e(f"s_mov_b32 s{R_X+1}, s{S_DBG+1}")
            a.e(f"s_mov_b32 s{R_X+2}, 256")
            a.e(f"s_mov_b32 s{R_X+3}, 0x00020000")
            a.e(f"v_mov_b32 v{V_T0}, 0")
            a.e("s_mov_b64 exec, 1")
            def amax(sreg, off, inv=False):
                a.e(f"v_mov_b32 v{V_T1}, s{sreg}")
                if inv: a.e(f"v_not_b32 v{V_T1}, v{V_T1}")
                a.e(f"buffer_atomic_umax v{V_T1}, v{V_T0}, {sr(R_X,4)}, 0 offen offset:{off} sc1")
                a.e("s_waitcnt vmcnt(0)")
            amax(TS_PAIRS[0], 0, True)
            amax(TS_PAIRS[0], 4)
            amax(TS_PAIRS[3], 16)
            amax(TS_PAIRS[4], 20)
            amax(TS_PAIRS[3], 28, True)
            a.e(f"s_cmp_eq_u32 s{S_W}, 0")
            a.e("s_cbranch_scc0 L_ts1")
            amax(TS_PAIRS[1], 8)
            amax(TS_PAIRS[2], 12)
            amax(TS_PAIRS[1], 32, True)
            amax(TS_PAIRS[2], 36, True)
            a.e("s_branch L_end")
            a.label("L_ts1")
            amax(TS_PAIRS[1], 24)
            a.e("s_branch L_end")
        for k in range(5):
            a.e(f"v_mov_b32 v{V_ACC+k}, s{TS_PAIRS[k]}")
        a.e(f"s_getreg_b32 s{S_T}, hwreg(HW_REG_XCC_ID)")
        a.e(f"v_mov_b32 v{V_ACC+5}, s{S_T}")
        a.e(f"s_getreg_b32 s{S_T}, hwreg(HW_REG_HW_ID)")
        a.e(f"v_mov_b32 v{V_ACC+6}, s{S_T}")
        a.e(f"v_mov_b32 v{V_ACC+7}, s77")
        a.e(f"s_lshl_b32 s{S_T}, s2, 3")
        a.e(f"s_add_u32 s{S_T}, s{S_T}, s{S_W}")
        a.e(f"s_lshl_b32 s{S_T}, s{S_T}, 6")
        a.e(f"s_add_u32 s{S_T}, s{S_T}, {WS_TS}")
        a.e(f"v_mov_b32 v{V_T0}, 0")
        a.e("s_mov_b64 exec, 1")
        a.e(f"buffer_store_dwordx4 {vr(V_ACC,4)}, v{V_T0}, {sr(R_WS,4)}, s{S_T} offen")
        a.e(f"buffer_store_dwordx4 {vr(V_ACC+4,4)}, v{V_T0}, {sr(R_WS,4)}, s{S_T} offen offset:16")
    return a

def group4(a, m, t):
    tp = "vcc" if t == "vcc" else f"s[{t}:{t+1}]"
    tl = "vcc_lo" if t == "vcc" else f"s{t}"
    a.e(f"s_lshr_b64 {tp}, s[{m}:{m+1}], 1")
    a.e(f"s_or_b64 s[{m}:{m+1}], s[{m}:{m+1}], {tp}")
    a.e(f"s_lshr_b64 {tp}, s[{m}:{m+1}], 2")
    a.e(f"s_or_b64 s[{m}:{m+1}], s[{m}:{m+1}], {tp}")
    a.e(f"s_and_b32 s{m}, s{m}, 0x11111111")
    a.e(f"s_and_b32 s{m+1}, s{m+1}, 0x11111111")
    a.e(f"s_mul_i32 s{m}, s{m}, 15")
    a.e(f"s_mul_i32 s{m+1}, s{m+1}, 15")
    a.e(f"s_or_b32 {tl}, s{m}, s{m+1}")

def tagmask(a, P, dst):
    a.e(f"v_cmp_ne_u32_sdwa s[{dst}:{dst+1}], v{P}, v{V_TAG8} src0_sel:BYTE_0 src1_sel:BYTE_0")
    for r in range(1, 4):
        m = SX_M + 2*(r-1)
        a.e(f"v_cmp_ne_u32_sdwa s[{m}:{m+1}], v{P+r}, v{V_TAG8} src0_sel:BYTE_0 src1_sel:BYTE_0")
    a.nop(4)
    a.e(f"s_or_b64 s[{SX_M}:{SX_M+1}], s[{SX_M}:{SX_M+1}], s[{SX_M+2}:{SX_M+3}]")
    a.e(f"s_or_b64 s[{dst}:{dst+1}], s[{dst}:{dst+1}], s[{SX_M+4}:{SX_M+5}]")
    a.e(f"s_or_b64 s[{dst}:{dst+1}], s[{dst}:{dst+1}], s[{SX_M}:{SX_M+1}]")
    group4(a, dst, SX_M)

def poll(a, opt, name, P, voff, soff, init_lo, init_hi, sleep, fast_thr):
    N = SX_NEED
    ld = f"buffer_load_dwordx4 {vr(P,4)}, v{voff}, {sr(R_WS,4)}, s{soff} offen sc1"
    a.e(f"s_mov_b32 s{N}, {init_lo}")
    a.e(f"s_mov_b32 s{N+1}, {init_hi}")
    a.e(f"s_mov_b32 s{S_SPIN}, 0")
    a.label(f"L_{name}poll")
    a.e(f"s_mov_b64 exec, s[{N}:{N+1}]")
    a.e(ld)
    a.e("s_waitcnt vmcnt(0)")
    tagmask(a, P, N)
    a.e(f"s_cbranch_scc0 L_{name}ok")
    if fast_thr:
        a.e(f"s_bcnt1_i32_b64 s{SX_M}, s[{N}:{N+1}]")
        a.e(f"s_cmp_le_u32 s{SX_M}, {fast_thr}")
        a.e(f"s_cbranch_scc1 L_{name}fast")
    a.e(f"s_add_u32 s{S_SPIN}, s{S_SPIN}, 1")
    a.e(f"s_cmp_gt_u32 s{S_SPIN}, {SPINMAX}")
    a.e(f"s_cbranch_scc1 L_{name}ok")
    if sleep: a.e(f"s_sleep {sleep}")
    a.e(f"s_branch L_{name}poll")
    if fast_thr:
        a.label(f"L_{name}fast")
        a.e(f"s_mov_b64 exec, s[{N}:{N+1}]")
        a.e(ld)
        a.e(f"s_sleep {opt.fsleep}")
        a.e(ld)
        a.e(f"s_sleep {opt.fsleep}")
        a.label(f"L_{name}fl")
        a.e(ld)
        a.e("s_waitcnt vmcnt(2)")
        tagmask(a, P, N)
        a.e(f"s_cbranch_scc0 L_{name}ok")
        a.e(f"s_mov_b64 exec, s[{N}:{N+1}]")
        a.e(f"s_add_u32 s{S_SPIN}, s{S_SPIN}, 1")
        a.e(f"s_cmp_gt_u32 s{S_SPIN}, {SPINMAX*4}")
        a.e(f"s_cbranch_scc0 L_{name}fl")
    a.label(f"L_{name}ok")
    a.e("s_mov_b64 exec, -1")

def gen_tail(a, opt):
    WOA = [[slot(0) + 6*k + 2*t for t in range(3)] for k in range(4)]
    O = slot(2)
    X = V_ACC
    a.c("waves 2..7: wait for the WG's wo DMA, prefetch wo^T A-fragments (tile nt = w-2 + 6k)")
    a.e(f"s_cmp_lt_u32 s{S_W}, 2")
    a.e("s_cbranch_scc1 L_pollers")
    a.e(f"v_mov_b32 v{V_T0}, 1")
    a.e("s_waitcnt vmcnt(0)")
    a.e("s_mov_b64 exec, 1")
    a.e(f"ds_add_u32 v{AD_ZERO}, v{V_T0} offset:{L_DCNT}")
    a.e("s_mov_b64 exec, -1")
    a.e(f"s_mov_b32 s{S_SPIN}, 0")
    a.label("L_dwait")
    a.e(f"ds_read_b32 v{V_T1}, v{AD_ZERO} offset:{L_DCNT}")
    a.e("s_waitcnt lgkmcnt(0)")
    a.e(f"v_cmp_ne_u32 vcc, 6, v{V_T1}")
    a.nop(5)
    a.e("s_cmp_eq_u64 vcc, 0")
    a.e("s_cbranch_scc1 L_dok")
    a.e(f"s_add_u32 s{S_SPIN}, s{S_SPIN}, 1")
    a.e(f"s_cmp_gt_u32 s{S_SPIN}, {SPINMAX*16}")
    a.e("s_cbranch_scc1 L_dok")
    a.e("s_sleep 1")
    a.e("s_branch L_dwait")
    a.label("L_dok")
    for t in range(3):
        for k in range(4):
            a.e(f"ds_read_b64_tr_b16 {vr(WOA[k][t],2)}, v{AD_TR} offset:{L_WO+10240*t+192*k}")
    a.e("s_branch L_h1done")
    a.label("L_pollers")
    a.c("hop 1 gather: waves 0,1 (b = wave): lane l: s = l/16, chunk = l%16")
    poll(a, opt, "h1", O, AD_H1, SX_H1, "-1", "-1", opt.hsleep, opt.f1)
    if opt.ts in (4, 9): stamp(a, opt, 2)
    if opt.ts == 5: stamp(a, opt, 4)
    Ml, Mm = X, X + 1
    a.e(f"v_mov_b32_dpp v{Ml}, v{O} row_newbcast:12 row_mask:0xf bank_mask:0xf")
    a.e(f"v_mov_b32_dpp v{Mm}, v{O+1} row_newbcast:12 row_mask:0xf bank_mask:0xf")
    a.e(f"v_and_b32 v{Mm}, 0xffffff00, v{Mm}")
    Mx = X + 2
    a.e(f"v_mov_b32 v{Mx}, v{Mm}")
    allred_rows(a, "v_max_f32", Mx, X + 3)
    a.e(f"v_sub_f32 v{Mm}, v{Mm}, v{Mx}")
    a.e(f"v_exp_f32 v{Mm}, v{Mm}")
    a.e("s_nop 0")
    a.e(f"v_mul_f32 v{Ml}, v{Mm}, v{Ml}")
    OW = O + 4
    for r in range(4):
        a.e(f"v_mul_f32 v{OW+r}, v{Mm}, v{O+r}")
    a.e(f"v_mov_b32 v{X+3}, v{Ml}")
    a.nop(1)
    a.e(f"v_permlane32_swap_b32 v{OW}, v{OW+2}")
    a.e(f"v_permlane32_swap_b32 v{OW+1}, v{OW+3}")
    a.e(f"v_permlane16_swap_b32 v{Ml}, v{X+3}")
    a.e(f"v_add_f32 v{OW}, v{OW}, v{OW+2}")
    a.e(f"v_add_f32 v{OW+1}, v{OW+1}, v{OW+3}")
    a.e(f"v_add_f32 v{Ml}, v{Ml}, v{X+3}")
    a.e(f"v_mov_b32 v{X+3}, v{Ml}")
    a.nop(1)
    a.e(f"v_permlane16_swap_b32 v{OW}, v{OW+1}")
    a.e(f"v_permlane32_swap_b32 v{Ml}, v{X+3}")
    a.e(f"v_add_f32 v{OW}, v{OW}, v{OW+1}")
    a.e(f"v_add_f32 v{Ml}, v{Ml}, v{X+3}")
    a.e(f"v_rcp_f32 v{Ml}, v{Ml}")
    a.e("s_nop 0")
    a.e(f"v_mul_f32 v{OW}, v{OW}, v{Ml}")
    a.e(f"v_cvt_pk_bf16_f32 v{OW}, v{OW}, v{OW}")
    a.e(f"s_mov_b32 exec_lo, 0x0fff0fff")
    a.e(f"s_mov_b32 exec_hi, 0x0fff0fff")
    a.e(f"ds_write_b16 v{AD_OBW}, v{OW} offset:{L_OBF}")
    a.e("s_mov_b64 exec, -1")
    a.label("L_h1done")
    a.e("s_waitcnt lgkmcnt(0)")
    a.e("s_barrier")
    a.c("out-proj MFMA (waves 2..7)")
    a.e(f"s_cmp_lt_u32 s{S_W}, 2")
    a.e("s_cbranch_scc1 L_nomfma")
    if opt.ts == 5: stamp(a, opt, 3)
    B = [slot(4) + 2*t for t in range(3)]
    for t in range(3):
        a.e(f"ds_read_b64 {vr(B[t],2)}, v{AD_B} offset:{L_OBF+32*t}")
    D = [V_ACC + 4*k for k in range(4)]
    for t in range(3):
        a.e(f"s_waitcnt lgkmcnt({2-t})")
        for k in range(4):
            src = "0" if t == 0 else vr(D[k], 4)
            a.e(f"v_mfma_f32_16x16x16_bf16 {vr(D[k],4)}, {vr(WOA[k][t],2)}, {vr(B[t],2)}, {src}")
    a.e(f"s_mov_b32 exec_lo, 0x00030003")
    a.e(f"s_mov_b32 exec_hi, 0x00030003")
    a.nop(3)
    sts = [SX_ST, SX_ST+1, SX_ST+2, SX_ST3]
    for k in range(4):
        if k == 3:
            a.e(f"s_cmp_lt_u32 s{S_W}, 4")
            a.e("s_cbranch_scc0 L_no3")
        for r in range(4):
            a.e(f"v_bfi_b32 v{D[k]+r}, v{V_FF}, v{V_TAG8}, v{D[k]+r}")
        a.e(f"buffer_store_dwordx4 {vr(D[k],4)}, v{AD_ST}, {sr(R_WS,4)}, s{sts[k]} offen sc1")
    a.label("L_no3")
    a.e("s_mov_b64 exec, -1")
    if opt.ts == 5: stamp(a, opt, 4)
    if opt.ts == 6: stamp(a, opt, 2)
    a.label("L_nomfma")
    if opt.ts == 4: stamp(a, opt, 3)
    a.c("hop 2: all 8 waves of WGs rec < 80; wave k sums producers 16k..16k+15")
    a.e(f"s_cmp_lt_u32 s{S_REC}, 80")
    a.e("s_cbranch_scc0 L_fin")
    P = slot(5)
    poll(a, opt, "h2", P, AD_L16, SX_H2, "-1", "-1", opt.h2sleep, opt.f2)
    if opt.ts == 6: stamp(a, opt, 3)
    PW = P + 4
    for r in range(4):
        a.e(f"v_mov_b32 v{PW+r}, v{P+r}")
    reduce4_rows(a, PW)
    a.nop(2)
    a.e(f"v_add_f32_dpp v{PW}, v{PW}, v{PW} row_ror:8 row_mask:0xf bank_mask:0xf")
    a.nop(2)
    a.e(f"v_add_f32_dpp v{PW}, v{PW}, v{PW} row_ror:4 row_mask:0xf bank_mask:0xf")
    a.e(f"s_mov_b32 exec_lo, 0x000f000f")
    a.e(f"s_mov_b32 exec_hi, 0x000f000f")
    a.e(f"ds_write_b32 v{AD_FW}, v{PW} offset:{L_FIN}")
    a.e("s_mov_b64 exec, -1")
    a.e("s_waitcnt lgkmcnt(0)")
    a.e("s_barrier")
    a.e(f"s_cmp_eq_u32 s{S_W}, 0")
    a.e("s_cbranch_scc0 L_fin")
    a.e(f"v_lshlrev_b32 v{V_T0}, 2, v{V_LANE}")
    F = slot(6)
    for k in range(4):
        a.e(f"ds_read2_b32 {vr(F+2*k,2)}, v{V_T0} offset0:{(L_FIN % 1024)//4 + 32*k} offset1:{(L_FIN % 1024)//4 + 32*k + 16}" if False else
            f"ds_read2_b32 {vr(F+2*k,2)}, v{V_T2} offset0:{32*k} offset1:{32*k+16}")
    a.lines.insert(len(a.lines)-4, f"    v_add_u32 v{V_T2}, {L_FIN}, v{V_T0}")
    a.e(f"v_lshlrev_b32 v{V_T1}, 1, v{V_LANE}")
    a.e("s_waitcnt lgkmcnt(0)")
    a.e(f"v_add_f32 v{F}, v{F}, v{F+1}")
    a.e(f"v_add_f32 v{F+2}, v{F+2}, v{F+3}")
    a.e(f"v_add_f32 v{F+4}, v{F+4}, v{F+5}")
    a.e(f"v_add_f32 v{F+6}, v{F+6}, v{F+7}")
    a.e(f"v_add_f32 v{F}, v{F}, v{F+2}")
    a.e(f"v_add_f32 v{F+4}, v{F+4}, v{F+6}")
    a.e(f"v_add_f32 v{F}, v{F}, v{F+4}")
    a.e(f"v_cvt_pk_bf16_f32 v{F}, v{F}, v{F}")
    a.e("s_mov_b64 exec, 0xffff")
    a.e(f"buffer_store_short v{F}, v{V_T1}, {sr(R_OUT,4)}, s{SX_OUT} offen{opt.outfl}")
    a.e(f"s_cmp_eq_u32 s{S_REC}, 0")
    a.e("s_cbranch_scc0 L_fin2")
    a.e(f"v_mov_b32 v{V_T0}, s{S_TAG}")
    a.e("s_mov_b64 exec, 1")
    a.e(f"buffer_store_dword v{V_T0}, v{AD_ZERO}, {sr(R_WS,4)}, {WS_EPOCH} offen sc1")
    a.label("L_fin2")
    a.e("s_mov_b64 exec, -1")
    a.label("L_fin")

def finish(a):
    a.label("L_end")
    a.e("s_endpgm")
    a.lines.append('.section .rodata,"a"')
    a.lines.append(".p2align 6")
    a.lines.append(f".amdhsa_kernel {KNAME}")
    for l in ["next_free_vgpr 256", "next_free_sgpr 102", "accum_offset 256", "group_segment_fixed_size 0",
              "kernarg_size 64", "user_sgpr_count 2", "user_sgpr_kernarg_segment_ptr 1", "system_sgpr_workgroup_id_x 1"]:
        a.lines.append("  .amdhsa_" + l)
    a.lines.append(".end_amdhsa_kernel")
    return "\n".join(a.lines) + "\n"

def parser():
    p = argparse.ArgumentParser()
    p.add_argument("--nt", type=int, default=1)
    p.add_argument("--ts", type=int, default=0)
    p.add_argument("--grid", type=int, default=256)
    p.add_argument("--qdelay", type=int, default=32)
    p.add_argument("--qsleep", type=int, default=8)
    p.add_argument("--hsleep", type=int, default=1)
    p.add_argument("--h2sleep", type=int, default=1)
    p.add_argument("--fine", type=int, default=5)
    p.add_argument("--tgroups", type=int, default=9)
    p.add_argument("--map", type=int, default=2)
    p.add_argument("--ajoin", type=int, default=1)
    p.add_argument("--f1", type=int, default=16)
    p.add_argument("--f2", type=int, default=8)
    p.add_argument("--fsleep", type=int, default=5)
    p.add_argument("--outfl", default="")
    p.add_argument("--rot", type=int, default=0)
    p.add_argument("--nsa", type=int, default=16)
    p.add_argument("--nsmall", type=int, default=32)
    p.add_argument("--nsb", type=int, default=8)
    p.add_argument("--cstride", type=int, default=16640)
    p.add_argument("--noq", type=int, default=0)
    p.add_argument("--nowo", type=int, default=0)
    p.add_argument("--notail", type=int, default=0)
    p.add_argument("-o", default="k.s")
    return p

if __name__ == "__main__":
    opt = parser().parse_args()
    setcfg(opt.nsa, opt.nsb, opt.nsmall)
    a = gen(opt)
    open(opt.o, "w").write(finish(a))
    print("wrote", opt.o, len(a.lines), "lines")
```

```python
import sys, argparse, struct

KNAME = "standalone__sliding_block_cached__decode_kernel"

def f32bits(x):
    return struct.unpack("<I", struct.pack("<f", x))[0]

class A:
    def __init__(self):
        self.lines = []
        self.vm = []
    def e(self, s):
        self.lines.append("    " + s)
    def c(self, s):
        self.lines.append("    ; " + s)
    def label(self, n):
        self.lines.append(n + ":")
    def vmem(self, s, tag=None):
        self.e(s)
        self.vm.append(tag)
        assert len(self.vm) <= 63, ("too many outstanding", len(self.vm))
    def throttle(self, D, add=1):
        if D and len(self.vm) + add > D:
            n = D - add
            self.e(f"s_waitcnt vmcnt({n})")
            self.vm = self.vm[len(self.vm) - n:] if n > 0 else []
    def wait_vm(self, tag):
        if tag not in self.vm:
            return
        idx = max(i for i, t in enumerate(self.vm) if t == tag)
        n = len(self.vm) - 1 - idx
        self.e(f"s_waitcnt vmcnt({n})")
        self.vm = self.vm[idx + 1:]
    def nop(self, n):
        while n > 0:
            k = min(n, 16)
            self.e(f"s_nop {k-1}")
            n -= k

def vr(a, n=1):
    return f"v{a}" if n == 1 else f"v[{a}:{a+n-1}]"
def sr(a, n=1):
    return f"s{a}" if n == 1 else f"s[{a}:{a+n-1}]"

V_TID, V_LANE, V_OFFKV, V_OFFW = 0, 1, 2, 3
V_X = 4
V_TAG8 = 3
V_FF = 4
V_LDSP = 5
V_L = 6
V_MC = 7
V_OFFD = 8
V_T0, V_T1, V_T2 = 9, 10, 11
V_Q = 12
V_S = 24
V_ACC = 40
V_RING = 64

S_X, S_K, S_V, S_WQ, S_WO, S_OUT, S_DBG, S_WS = 4, 6, 8, 10, 12, 14, 16, 18
R_K, R_V, R_WQ, R_X, R_WO, R_WS, R_OUT = 20, 24, 28, 32, 36, 40, 44
S_EPOCH = 3
S_TAG = 48
S_RQ, S_CH = 49, 50
S_CNT = 51
S_GOFF = 52
S_WOFF = 68
S_H, S_I, S_B, S_W = 78, 79, 80, 81
S_T = 82
S_REC = 94
S_SPIN = 95
TS_PAIRS = [96, 98, 100, 90, 92]

L_WO = 0
L_PART = 32768
L_QBF = 40960
L_OBF = 41472
L_M = 41984
L_FLAG = 42048
L_SFLAG = 42064
L_TAG = 42112
L_DCNT = 42048 + 32
L_SIZE = 43008

WS_EPOCH = 0
WS_H1 = 0x100000
WS_H2 = 0x200000
WS_QX = 0x300000
WS_TS = 0x400000
WS_CNT = 0x600000
CNT_STRIDE = 16640
NSA = 16
NSB = 8
def setcfg(nsa, nsb, nsmall=32):
    global NSA, NSB, STAT_ROWS, POOL_ROW0, NTASK
    NSA, NSB = nsa, nsb
    STAT_ROWS = 3*8*NSA + 5*8*NSB
    POOL_ROW0 = 4*STAT_ROWS
    global NT1, NT2
    pool = 4096 - POOL_ROW0
    NT2 = nsmall
    assert (pool - 8*NT2) % 16 == 0
    NT1 = (pool - 8*NT2)//16
    NTASK = NT1 + NT2
setcfg(16, 8)
WS_SIZE = 1610612736

AD_FIN, AD_L16, AD_H1, AD_OBW, AD_B, AD_ST, AD_TR, AD_ZERO, AD_FW = [V_RING + 12*15 + k for k in range(9)]
AD_DMA = V_RING + 12*14
AD_LW, AD_MW = V_RING + 12*14 + 5, V_RING + 12*14 + 6
SX_DMA = 59
SX_ST3 = 50
SX_REC, SX_H1, SX_ST, SX_H2, SX_OUT, SX_NEED, SX_M = 52, 53, 54, 57, 58, 60, 62
L_FIN = L_PART
LOG2E = f32bits(1.4426950408889634)
SCALE = f32bits(192 ** -0.5)
SPINMAX = 1 << 17

def slot(g):
    return V_RING + 12 * g

def reduce24(a, acc):
    a.nop(3)
    for j in range(3):
        for e in range(4):
            a.e(f"v_permlane32_swap_b32 v{acc+8*j+e}, v{acc+8*j+e+4}")
    for j in range(3):
        for e in range(4):
            a.e(f"v_add_f32 v{acc+8*j+e}, v{acc+8*j+e}, v{acc+8*j+e+4}")
    a.nop(2)
    for j in range(3):
        for e in range(2):
            a.e(f"v_permlane16_swap_b32 v{acc+8*j+e}, v{acc+8*j+e+2}")
    for j in range(3):
        for e in range(2):
            a.e(f"v_add_f32 v{acc+8*j+e}, v{acc+8*j+e}, v{acc+8*j+e+2}")
    a.nop(2)
    for j in range(3):
        a.e(f"v_add_f32_dpp v{acc+8*j}, v{acc+8*j}, v{acc+8*j} row_ror:8 row_mask:0xf bank_mask:0x3")
    for j in range(3):
        a.e(f"v_add_f32_dpp v{acc+8*j}, v{acc+8*j+1}, v{acc+8*j+1} row_ror:8 row_mask:0xf bank_mask:0xc")

def allred_rows(a, op, v, t):
    a.e(f"v_mov_b32 v{t}, v{v}")
    a.nop(2)
    a.e(f"v_permlane16_swap_b32 v{v}, v{t}")
    a.e(f"{op} v{v}, v{v}, v{t}")
    a.e(f"v_mov_b32 v{t}, v{v}")
    a.nop(2)
    a.e(f"v_permlane32_swap_b32 v{v}, v{t}")
    a.e(f"{op} v{v}, v{v}, v{t}")

def allred_hi(a, op, v, t):
    a.nop(2)
    a.e(f"{op}_dpp v{v}, v{v}, v{v} row_ror:8 row_mask:0xf bank_mask:0xf")
    allred_rows(a, op, v, t)

def reduce4_rows(a, P):
    a.nop(2)
    a.e(f"v_permlane32_swap_b32 v{P}, v{P+2}")
    a.e(f"v_permlane32_swap_b32 v{P+1}, v{P+3}")
    a.e(f"v_add_f32 v{P}, v{P}, v{P+2}")
    a.e(f"v_add_f32 v{P+1}, v{P+1}, v{P+3}")
    a.nop(2)
    a.e(f"v_permlane16_swap_b32 v{P}, v{P+1}")
    a.e(f"v_add_f32 v{P}, v{P}, v{P+1}")

def stamp(a, opt, k):
    if opt.ts:
        p = TS_PAIRS[k]
        a.e(f"s_memrealtime s[{p}:{p+1}]")

def forms(a, src, odd, lo, hi):
    if not odd:
        a.e(f"v_and_b32 v{lo}, 0xffff, v{src}")
        a.e(f"v_lshlrev_b32 v{hi}, 16, v{src}")
    else:
        a.e(f"v_lshrrev_b32 v{lo}, 16, v{src}")
        a.e(f"v_and_b32 v{hi}, 0xffff0000, v{src}")

def pv(a, base, acc, lo, hi):
    for j in range(3):
        for i in range(4):
            w = base + 4*j + i
            a.e(f"v_dot2c_f32_bf16 v{acc+8*j+2*i}, v{w}, v{lo}")
            a.e(f"v_dot2c_f32_bf16 v{acc+8*j+2*i+1}, v{w}, v{hi}")

def tagcheck(a, P, t, dst):
    a.e(f"v_xor_b32 v{t}, v{P}, v{V_TAG8}")
    a.e(f"v_xor_b32 v{t+1}, v{P+1}, v{V_TAG8}")
    a.e(f"v_xor_b32 v{t+2}, v{P+2}, v{V_TAG8}")
    a.e(f"v_xor_b32 v{t+3}, v{P+3}, v{V_TAG8}")
    a.e(f"v_or3_b32 v{t}, v{t}, v{t+1}, v{t+2}")
    a.e(f"v_or_b32 v{t}, v{t}, v{t+3}")
    a.e(f"v_and_b32 v{t}, v{V_FF}, v{t}")
    a.e(f"v_cmp_ne_u32 {dst}, 0, v{t}")

def gen(opt):
    a = A()
    nt = " nt" if opt.nt else ""
    a.lines.append(f"; @launch grid=({opt.grid},1,1) block=(512,1,1) lds={L_SIZE}")
    a.lines.append('.amdgcn_target "amdgcn-amd-amdhsa--gfx950"')
    a.lines.append(".text")
    a.lines.append(f".globl {KNAME}")
    a.lines.append(".p2align 8")
    a.lines.append(f".type {KNAME},@function")
    a.label(KNAME)
    a.e("s_cmp_ge_u32 s2, 256")
    a.e("s_cbranch_scc1 L_end")
    a.e("s_load_dwordx16 s[4:19], s[0:1], 0")
    stamp(a, opt, 0)
    if opt.map == 1:
        a.e(f"s_lshr_b32 s{S_H}, s2, 3")
        a.e(f"s_and_b32 s{S_I}, s2, 7")
    elif opt.map == 3:
        a.e(f"s_lshr_b32 s{S_H}, s2, 3")
        a.e(f"s_and_b32 s{S_T}, s2, 7")
        a.e(f"s_lshr_b32 s{S_T+1}, s{S_T}, 2")
        a.e(f"s_xor_b32 s{S_T+1}, s{S_T+1}, s{S_T}")
        a.e(f"s_and_b32 s{S_T+1}, s{S_T+1}, 1")
        a.e(f"s_lshl_b32 s{S_T+1}, s{S_T+1}, 2")
        a.e(f"s_lshr_b32 s{S_T}, s{S_T}, 1")
        a.e(f"s_add_u32 s{S_I}, s{S_T}, s{S_T+1}")
    elif opt.map == 2:
        a.e(f"s_lshr_b32 s{S_H}, s2, 3")
        a.e(f"s_and_b32 s{S_T}, s2, 7")
        a.e(f"s_bcnt1_i32_b32 s{S_T+1}, s{S_T}")
        a.e(f"s_and_b32 s{S_T+1}, s{S_T+1}, 1")
        a.e(f"s_lshl_b32 s{S_T+1}, s{S_T+1}, 2")
        a.e(f"s_lshr_b32 s{S_T}, s{S_T}, 1")
        a.e(f"s_add_u32 s{S_I}, s{S_T}, s{S_T+1}")
    else:
        a.e(f"s_and_b32 s{S_T}, s2, 7")
        a.e(f"s_lshr_b32 s{S_T+1}, s2, 3")
        a.e(f"s_and_b32 s{S_T+2}, s{S_T+1}, 3")
        a.e(f"s_lshl_b32 s{S_T+2}, s{S_T+2}, 3")
        a.e(f"s_add_u32 s{S_H}, s{S_T}, s{S_T+2}")
        a.e(f"s_lshr_b32 s{S_I}, s{S_T+1}, 2")
    a.e(f"s_lshr_b32 s{S_B}, s{S_I}, 2")
    a.e(f"s_lshl_b32 s{S_REC}, s{S_H}, 3")
    a.e(f"s_add_u32 s{S_REC}, s{S_REC}, s{S_I}")
    a.e(f"s_lshr_b32 s{S_RQ}, s{S_I}, 1")
    a.e(f"s_and_b32 s{S_CH}, s{S_I}, 1")
    a.e(f"v_and_b32 v{V_LANE}, 63, v{V_TID}")
    a.e(f"v_lshrrev_b32 v{V_T0}, 6, v{V_TID}")
    a.e(f"v_lshrrev_b32 v{V_T1}, 3, v{V_LANE}")
    a.e(f"v_and_b32 v{V_T2}, 7, v{V_LANE}")
    a.e(f"v_readfirstlane_b32 s{S_W}, v{V_T0}")
    a.e(f"v_lshlrev_b32 v{V_T2}, 4, v{V_T2}")
    a.e(f"v_mul_u32_u24 v{V_OFFKV}, 384, v{V_T1}")
    a.e(f"v_add_u32 v{V_OFFKV}, v{V_OFFKV}, v{V_T2}")
    a.e(f"v_mul_u32_u24 v{V_OFFW}, {10*12288}, v{V_T1}")
    a.e(f"v_add_u32 v{V_OFFW}, v{V_OFFW}, v{V_T2}")
    a.e(f"v_mul_u32_u24 v{V_T0}, 20, v{V_T1}")
    a.e(f"v_mov_b32 v{V_T1}, 0")
    a.e(f"v_lshlrev_b32 v{V_T2}, 2, v{V_LANE}")
    a.e("s_mov_b64 exec, 0xffff")
    a.e(f"ds_write_b32 v{V_T2}, v{V_T1} offset:{L_FLAG}")
    a.e("s_mov_b64 exec, -1")
    if not opt.rot:
        for g in range(16):
            a.e(f"s_mov_b32 s{S_GOFF+g}, {3072*g}")
    for g in range(10):
        a.e(f"s_mov_b32 s{S_WOFF+g}, {12288*g}")
    if opt.rot:
        a.e(f"s_sub_u32 s{S_T}, s{S_W}, 1")
        a.e(f"s_cmp_lt_u32 s{S_T}, 3")
        a.e(f"s_cselect_b32 s{S_T+1}, {NSA-1}, {NSB-1}")
        a.e(f"s_mul_i32 s{S_T+2}, s{S_H}, {opt.rot}")
        a.e(f"s_lshr_b32 s{S_T+3}, s{S_I}, 2")
        a.e(f"s_mul_i32 s{S_T+3}, s{S_T+3}, 5")
        a.e(f"s_add_u32 s{S_T+2}, s{S_T+2}, s{S_T+3}")
        for g in range(16):
            a.e(f"s_add_u32 s{S_T}, s{S_T+2}, {g}")
            a.e(f"s_and_b32 s{S_T}, s{S_T}, s{S_T+1}")
            a.e(f"s_mul_i32 s{S_GOFF+g}, s{S_T}, 3072")
    a.e(f"v_mov_b32 v{V_OFFD}, v{V_OFFKV}")
    a.e(f"s_sub_u32 s{S_T}, s{S_W}, 1")
    a.e(f"s_mul_i32 s{S_T}, s{S_T}, {8*NSA*384}")
    a.e(f"s_sub_u32 s{S_T+1}, s{S_W}, 3")
    a.e(f"s_max_i32 s{S_T+1}, s{S_T+1}, 0")
    a.e(f"s_mul_i32 s{S_T+1}, s{S_T+1}, {8*NSB*384}")
    a.e(f"s_add_u32 s{S_T+1}, s{S_T+1}, {3*8*NSA*384}")
    a.e(f"s_sub_u32 s{S_T+2}, s{S_W}, 1")
    a.e(f"s_cmp_lt_u32 s{S_T+2}, 3")
    a.e(f"s_cselect_b32 s{S_T}, s{S_T}, s{S_T+1}")
    a.e(f"s_and_b32 s{S_T+1}, s{S_I}, 3")
    a.e(f"s_mul_i32 s{S_T+1}, s{S_T+1}, {STAT_ROWS*384}")
    a.e(f"s_add_u32 s{S_T}, s{S_T}, s{S_T+1}")
    a.e(f"v_add_u32 v{V_OFFKV}, s{S_T}, v{V_OFFKV}")
    a.e(f"s_mul_i32 s{S_T+2}, s{S_I}, 160")
    a.e(f"v_add_u32 v{V_T0}, s{S_T+2}, v{V_T0}")
    a.e(f"s_lshl_b32 s{S_T}, s{S_B}, 5")
    a.e(f"s_add_u32 s{S_T}, s{S_T}, s{S_H}")
    a.e(f"s_mul_i32 s{S_CNT}, s{S_T}, {opt.cstride}")
    a.e(f"s_add_u32 s{S_CNT}, s{S_CNT}, {WS_CNT}")
    a.e(f"s_mul_i32 s{S_T}, s{S_T}, 6291456")
    a.e(f"s_add_u32 s{S_T}, s{S_T}, 4718592")
    a.e(f"s_mul_i32 s{S_T+1}, s{S_H}, 384")
    a.e(f"s_mul_i32 s{S_T+3}, s{S_I}, {80*12288}")
    a.e(f"s_add_u32 s{S_T+1}, s{S_T+1}, s{S_T+3}")
    a.e(f"s_mul_i32 s{S_T+2}, s{S_H}, {192*1280}")
    a.e(f"s_mul_i32 s{S_T+3}, s{S_RQ}, {48*1280}")
    a.e(f"s_add_u32 s{S_T+2}, s{S_T+2}, s{S_T+3}")
    a.e(f"s_mul_i32 s{S_T+3}, s{S_CH}, 640")
    a.e(f"s_add_u32 s{S_T+2}, s{S_T+2}, s{S_T+3}")
    a.e("s_waitcnt lgkmcnt(0)")
    def srd(R, P, off_s, nbytes):
        if off_s is None:
            a.e(f"s_mov_b32 s{R}, s{P}")
            a.e(f"s_mov_b32 s{R+1}, s{P+1}")
        else:
            a.e(f"s_add_u32 s{R}, s{P}, s{off_s}")
            a.e(f"s_addc_u32 s{R+1}, s{P+1}, 0")
        a.e(f"s_mov_b32 s{R+2}, {nbytes}")
        a.e(f"s_mov_b32 s{R+3}, 0x00020000")
    srd(R_K, S_K, S_T, 4096*384)
    def rest_srds():
        srd(R_V, S_V, S_T, 4096*384)
        srd(R_WO, S_WO, S_T+2, 47*1280+640)
        srd(R_OUT, S_OUT, None, 2560)

    def load_grp(kind, g, sl, thr=None):
        R, voff, soff, fl = {"K": (R_K, V_OFFKV, S_GOFF + g, nt), "V": (R_V, V_OFFKV, S_GOFF + g, opt.vfl),
                             "W": (R_WQ, V_OFFW, S_WOFF + g, opt.wfl)}[kind]
        for j in range(3):
            if thr is None: thr = (kind == "K" and g < opt.tgroups)
            if opt.fine and thr: a.throttle(opt.fine, 1)
            a.vmem(f"buffer_load_dwordx4 {vr(slot(sl)+4*j,4)}, v{voff}, {sr(R,4)}, s{soff} offen offset:{128*j}{fl}", (kind, g))

    a.e(f"s_cmp_eq_u32 s{S_W}, 0")
    a.e("s_cbranch_scc0 L_main")
    a.c("wave 0: q projection partial + exchange")
    srd(R_WS, S_WS, None, WS_SIZE)
    srd(R_X, S_X, None, 2560)
    srd(R_WQ, S_WQ, S_T+1, 79*12288+384)
    if opt.noq:
        a.e(f"s_and_b32 s{S_T+4}, s{S_I}, 3")
        a.e(f"s_cmp_eq_u32 s{S_T+4}, 0")
        a.e("s_cbranch_scc0 L_noinit0")
        a.e(f"v_mov_b32 v{V_T1}, 0")
        a.e("s_mov_b64 exec, 1")
        a.e(f"buffer_store_dword v{V_T1}, v{V_T1}, {sr(R_WS,4)}, s{S_CNT} offen sc1")
        a.e("s_mov_b64 exec, -1")
        a.e("s_waitcnt vmcnt(0)")
        a.label("L_noinit0")
        a.e(f"s_sleep {opt.noq}")
        a.e(f"v_mov_b32 v{V_T0}, 0")
        a.e(f"v_mov_b32 v{V_T2}, 1")
        a.e("s_mov_b64 exec, 1")
        a.e(f"ds_write_b32 v{V_T0}, v{V_T2} offset:{L_FLAG}")
        a.e("s_mov_b64 exec, -1")
        stamp(a, opt, 1)
        stamp(a, opt, 2)
        a.e("s_branch L_mainB")
    VE = slot(14)
    a.e(f"v_mov_b32 v{VE+1}, 0")
    a.vmem(f"buffer_load_dword v{VE}, v{VE+1}, {sr(R_WS,4)}, {WS_EPOCH} offen sc1", "x")
    X1 = slot(10)
    F1 = slot(10) + 6
    ACC1 = slot(11)
    a.vmem(f"buffer_load_dwordx4 {vr(slot(13),4)}, v{V_T0}, {sr(R_X,4)}, 0 offen", "x")
    X0 = slot(13)
    a.vmem(f"buffer_load_dword v{X0+4}, v{V_T0}, {sr(R_X,4)}, 0 offen offset:16", "x")
    a.vmem(f"buffer_load_dwordx4 {vr(X1,4)}, v{V_T0}, {sr(R_X,4)}, 0 offen offset:1280", "x")
    a.vmem(f"buffer_load_dword v{X1+4}, v{V_T0}, {sr(R_X,4)}, 0 offen offset:1296", "x")
    a.e(f"s_and_b32 s{S_T+4}, s{S_I}, 3")
    a.e(f"s_cmp_eq_u32 s{S_T+4}, 0")
    a.e("s_cbranch_scc0 L_noinit")
    a.e(f"v_mov_b32 v{V_T1}, 0")
    a.e("s_mov_b64 exec, 1")
    a.e(f"buffer_store_dword v{V_T1}, v{V_T1}, {sr(R_WS,4)}, s{S_CNT} offen sc1")
    a.e("s_mov_b64 exec, -1")
    a.label("L_noinit")
    for g in range(10):
        load_grp("W", g, g)
        if g == 1:
            rest_srds()
            a.e("s_barrier")
    for r in range(24):
        a.e(f"v_mov_b32 v{V_ACC+r}, 0")
        a.e(f"v_mov_b32 v{ACC1+r}, 0")
    for g in range(10):
        a.wait_vm(("W", g))
        forms(a, X0 + g//2, g % 2, V_T0, V_T1)
        forms(a, X1 + g//2, g % 2, F1, F1+1)
        pv(a, slot(g), V_ACC, V_T0, V_T1)
        pv(a, slot(g), ACC1, F1, F1+1)
    reduce24(a, V_ACC)
    reduce24(a, ACC1)
    a.e(f"v_readfirstlane_b32 s{S_EPOCH}, v{VE}")
    a.nop(4)
    a.e(f"s_add_u32 s{S_TAG}, s{S_EPOCH}, 1")
    G0, G1 = V_Q, V_Q + 4
    for j in range(3):
        a.e(f"v_mov_b32 v{G0+j}, v{V_ACC+8*j}")
        a.e(f"v_mov_b32 v{G1+j}, v{ACC1+8*j}")
    a.e(f"v_mov_b32 v{G0+3}, s{S_TAG}")
    a.e(f"v_mov_b32 v{G1+3}, s{S_TAG}")
    a.e(f"v_lshlrev_b32 v{V_T1}, 4, v{V_LANE}")
    a.e(f"s_lshl_b32 s{S_T}, s{S_H}, 14")
    a.e(f"s_add_u32 s{S_T}, s{S_T}, {WS_QX}")
    a.e(f"s_lshl_b32 s{S_T+1}, s{S_I}, 10")
    a.e(f"s_add_u32 s{S_T+1}, s{S_T+1}, s{S_T}")
    a.e(f"s_add_u32 s{S_T+2}, s{S_T+1}, 8192")
    a.e(f"buffer_store_dwordx4 {vr(G0,4)}, v{V_T1}, {sr(R_WS,4)}, s{S_T+1} offen sc1")
    a.e(f"buffer_store_dwordx4 {vr(G1,4)}, v{V_T1}, {sr(R_WS,4)}, s{S_T+2} offen sc1")
    if opt.ts in (1, 8): stamp(a, opt, 1)
    a.e(f"s_lshl_b32 s{S_T+1}, s{S_B}, 13")
    a.e(f"s_add_u32 s{S_T}, s{S_T}, s{S_T+1}")
    a.e(f"s_add_u32 s{S_T+1}, s{S_T}, 4096")
    GA = slot(0)
    QM = S_GOFF
    QM = S_WOFF
    qmask = [68, 70, 72, 74, 76, 84, 86, 88]
    for i in range(8):
        a.e(f"s_mov_b64 s[{qmask[i]}:{qmask[i]+1}], -1")
    a.e(f"s_mov_b32 s{S_SPIN}, 0")
    if opt.qdelay: a.e(f"s_sleep {opt.qdelay}")
    a.label("L_qpoll")
    for i in range(8):
        a.e(f"s_mov_b64 exec, s[{qmask[i]}:{qmask[i]+1}]")
        a.e(f"s_cbranch_execz L_qs{i}")
        a.e(f"buffer_load_dwordx4 {vr(GA+4*i,4)}, v{V_T1}, {sr(R_WS,4)}, s{S_T + (i//4)} offen offset:{1024*(i%4)} sc1")
        a.label(f"L_qs{i}")
    a.e("s_mov_b64 exec, -1")
    a.e("s_waitcnt vmcnt(0)")
    for i in range(8):
        a.e(f"v_cmp_ne_u32 s[{qmask[i]}:{qmask[i]+1}], s{S_TAG}, v{GA+4*i+3}")
    a.nop(5)
    for i in range(8):
        group4(a, qmask[i], "vcc")
    a.e(f"s_or_b64 vcc, s[{qmask[0]}:{qmask[0]+1}], s[{qmask[1]}:{qmask[1]+1}]")
    for i in range(2, 8):
        a.e(f"s_or_b64 vcc, vcc, s[{qmask[i]}:{qmask[i]+1}]")
    a.e("s_cbranch_scc0 L_qok")
    a.e(f"s_add_u32 s{S_SPIN}, s{S_SPIN}, 1")
    a.e(f"s_cmp_gt_u32 s{S_SPIN}, {SPINMAX}")
    a.e("s_cbranch_scc1 L_qok")
    if opt.qsleep: a.e(f"s_sleep {opt.qsleep}")
    a.e("s_branch L_qpoll")
    a.label("L_qok")
    if opt.ts in (1, 8): stamp(a, opt, 2)
    for j in range(3):
        a.e(f"v_add_f32 v{GA+j}, v{GA+j}, v{GA+4+j}")
        a.e(f"v_add_f32 v{GA+8+j}, v{GA+8+j}, v{GA+12+j}")
        a.e(f"v_add_f32 v{GA+16+j}, v{GA+16+j}, v{GA+20+j}")
        a.e(f"v_add_f32 v{GA+24+j}, v{GA+24+j}, v{GA+28+j}")
    for j in range(3):
        a.e(f"v_add_f32 v{GA+j}, v{GA+j}, v{GA+8+j}")
        a.e(f"v_add_f32 v{GA+16+j}, v{GA+16+j}, v{GA+24+j}")
    for j in range(3):
        a.e(f"v_add_f32 v{GA+j}, v{GA+j}, v{GA+16+j}")
    for j in range(3):
        a.e(f"v_cvt_pk_bf16_f32 v{GA+j}, v{GA+j}, v{GA+j}")
    a.e(f"v_and_b32 v{V_T0}, 7, v{V_LANE}")
    a.e(f"v_lshlrev_b32 v{V_T0}, 4, v{V_T0}")
    a.e(f"v_lshrrev_b32 v{V_T2}, 3, v{V_LANE}")
    a.e(f"v_lshl_add_u32 v{V_T0}, v{V_T2}, 1, v{V_T0}")
    for j in range(3):
        a.e(f"ds_write_b16 v{V_T0}, v{GA+j} offset:{L_QBF+128*j}")
    a.e(f"v_mov_b32 v{V_T0}, 0")
    a.e(f"v_mov_b32 v{V_T1}, s{S_TAG}")
    a.e(f"v_mov_b32 v{V_T2}, 1")
    a.e("s_mov_b64 exec, 1")
    a.e(f"ds_write_b32 v{V_T0}, v{V_T1} offset:{L_TAG}")
    a.e("s_waitcnt lgkmcnt(0)")
    a.e(f"ds_write_b32 v{V_T0}, v{V_T2} offset:{L_FLAG}")
    a.e("s_mov_b64 exec, -1")
    a.vm = []
    def pre_q(NS, sfx, dyn=False):
        a.vm = [("K", 0)]*3
        for g in range(1, NS):
            load_grp("K", g, g)
        if dyn:
            for g in range(NS - 4):
                load_grp("V", g, NS + g, thr=(NS + g < opt.tgroups))
        a.e(f"v_and_b32 v{V_T0}, 7, v{V_LANE}")
        a.e(f"v_lshlrev_b32 v{V_T1}, 5, v{V_T0}")
        a.e(f"v_lshrrev_b32 v{V_T2}, 3, v{V_LANE}")
        a.e(f"v_lshl_add_u32 v{V_T1}, v{V_T2}, 2, v{V_T1}")
        a.e(f"s_lshl_b32 s{S_T}, s{S_W}, 10")
        a.e(f"v_add_u32 v{V_LDSP}, s{S_T}, v{V_T1}")
        for g in range(NS):
            a.e(f"v_mov_b32 v{V_S+g}, 0")
        if opt.ts in (1, 8):
            a.e(f"s_cmp_eq_u32 s{S_W}, 0")
            a.e(f"s_cbranch_scc1 L_nost0{sfx}")
            stamp(a, opt, 1)
            a.label(f"L_nost0{sfx}")
        a.e(f"v_mov_b32 v{V_T2}, 0")
        a.e(f"s_mov_b32 s{S_SPIN}, 0")
        a.label(f"L_qwait{sfx}")
        a.e(f"ds_read_b32 v{V_T1}, v{V_T2} offset:{L_FLAG}")
        a.e("s_waitcnt lgkmcnt(0)")
        a.e(f"v_cmp_ne_u32 vcc, 1, v{V_T1}")
        a.nop(5)
        a.e("s_cmp_eq_u64 vcc, 0")
        a.e(f"s_cbranch_scc1 L_qready{sfx}")
        a.e(f"s_add_u32 s{S_SPIN}, s{S_SPIN}, 1")
        a.e(f"s_cmp_gt_u32 s{S_SPIN}, {SPINMAX*16}")
        a.e(f"s_cbranch_scc1 L_qready{sfx}")
        a.e("s_sleep 4")
        a.e(f"s_branch L_qwait{sfx}")
        a.label(f"L_qready{sfx}")
        a.e(f"v_lshlrev_b32 v{V_T0}, 4, v{V_T0}")
        for j in range(3):
            a.e(f"ds_read_b128 {vr(V_Q+4*j,4)}, v{V_T0} offset:{L_QBF+128*j}")
        a.e(f"ds_read_b32 v{V_TAG8}, v{V_T2} offset:{L_TAG}")
        a.e(f"v_mov_b32 v{V_FF}, 0xff")
        a.e("s_waitcnt lgkmcnt(0)")
        a.e(f"v_readfirstlane_b32 s{S_TAG}, v{V_TAG8}")
        a.e(f"v_and_b32 v{V_TAG8}, 0xff, v{V_TAG8}")
        if dyn:
            atomic()
            for g in range(NS - 4, NS):
                load_grp("V", g, NS + g)
            a.e(f"s_lshl_b32 s{S_T}, s{S_W}, 2")
            a.e(f"v_mov_b32 v{V_T1}, s{S_T}")
            a.e(f"v_mov_b32 v{V_T2}, 1")
            a.e("s_mov_b64 exec, 1")
            a.e(f"ds_write_b32 v{V_T1}, v{V_T2} offset:{L_SFLAG-16}")
            a.e("s_mov_b64 exec, -1")
        a.e("s_waitcnt lgkmcnt(0)")
        if opt.ts in (1, 8):
            a.e(f"s_cmp_eq_u32 s{S_W}, 0")
            a.e(f"s_cbranch_scc1 L_nost{sfx}")
            stamp(a, opt, 2)
            a.label(f"L_nost{sfx}")

    V_IDX = V_T2 + 0
    V_IDX = V_S + 15
    def atomic():
        a.e(f"v_mov_b32 v{V_IDX}, 1")
        a.e(f"v_mov_b32 v{V_IDX-1}, 0")
        a.e("s_mov_b64 exec, 1")
        a.vmem(f"buffer_atomic_add v{V_IDX}, v{V_IDX-1}, {sr(R_WS,4)}, s{S_CNT} offen sc0 sc1", "atom")
        a.e("s_mov_b64 exec, -1")

    def k_phase(NS, dyn):
        a.c("K phase")
        for g in range(NS):
            a.wait_vm(("K", g))
            for j in range(3):
                for i in range(4):
                    a.e(f"v_dot2c_f32_bf16 v{V_S+g}, v{slot(g)+4*j+i}, v{V_Q+4*j+i}")
            if not dyn:
                load_grp("V", g, g)

    def round_scores(regs, T):
        n = len(regs) // 2
        for k in range(n):
            a.e(f"v_cvt_pk_bf16_f32 v{T+k}, v{regs[2*k]}, v{regs[2*k+1]}")
        for k in range(n):
            a.e(f"v_lshlrev_b32 v{regs[2*k]}, 16, v{T+k}")
            a.e(f"v_and_b32 v{regs[2*k+1]}, 0xffff0000, v{T+k}")
        for r in regs:
            a.e(f"v_mul_f32 v{r}, 0x{SCALE:08x}, v{r}")
        for k in range(n):
            a.e(f"v_cvt_pk_bf16_f32 v{T+k}, v{regs[2*k]}, v{regs[2*k+1]}")
        for k in range(n):
            a.e(f"v_lshlrev_b32 v{regs[2*k]}, 16, v{T+k}")
            a.e(f"v_and_b32 v{regs[2*k+1]}, 0xffff0000, v{T+k}")

    def finish_l():
        a.e(f"v_mov_b32 v{V_T2}, v{V_L}")
        allred_hi(a, "v_add_f32", V_T2, V_T0)
        a.e(f"v_mul_f32 v{V_T1}, 0x{LOG2E:08x}, v{V_MC}")
        a.e("s_mov_b64 exec, 1")
        a.e(f"ds_write_b32 v{AD_LW}, v{V_T2} offset:{L_PART+768}")
        a.e(f"ds_write_b32 v{AD_MW}, v{V_T1} offset:{L_M}")
        a.e("s_mov_b64 exec, -1")

    def tail_prep():
        c16, g16 = V_T0, V_T1
        a.e(f"v_and_b32 v{c16}, 15, v{V_LANE}")
        a.e(f"v_lshrrev_b32 v{g16}, 4, v{V_LANE}")
        a.e(f"v_mul_u32_u24 v{AD_FIN}, 192, v{g16}")
        a.e(f"v_lshl_add_u32 v{AD_FIN}, v{c16}, 4, v{AD_FIN}")
        a.e(f"v_mov_b32 v{V_T2}, 768")
        a.e(f"v_cmp_gt_u32 vcc, 12, v{c16}")
        a.e(f"v_lshlrev_b32 v{AD_L16}, 4, v{V_LANE}")
        a.e(f"v_lshlrev_b32 v{AD_H1}, 10, v{g16}")
        a.e(f"v_cndmask_b32 v{AD_FIN}, v{V_T2}, v{AD_FIN}, vcc")
        a.e(f"v_lshl_add_u32 v{AD_H1}, v{c16}, 4, v{AD_H1}")
        a.e(f"v_lshlrev_b32 v{AD_OBW}, 3, v{c16}")
        a.e(f"v_lshl_add_u32 v{AD_OBW}, v{g16}, 1, v{AD_OBW}")
        a.e(f"s_lshl_b32 s{S_T}, s{S_W}, 7")
        a.e(f"v_add_u32 v{AD_OBW}, s{S_T}, v{AD_OBW}")
        a.e(f"v_and_b32 v{V_T2}, 1, v{V_LANE}")
        a.e(f"v_lshlrev_b32 v{AD_B}, 7, v{V_T2}")
        a.e(f"v_lshl_add_u32 v{AD_B}, v{g16}, 3, v{AD_B}")
        a.e(f"v_mul_u32_u24 v{AD_ST}, {40*8192}, v{V_T2}")
        a.e(f"v_lshl_add_u32 v{AD_ST}, v{g16}, 4, v{AD_ST}")
        a.e(f"v_lshlrev_b32 v{AD_TR}, 2, v{g16}")
        a.e(f"v_bfe_u32 v{V_T2}, v{V_LANE}, 2, 2")
        a.e(f"v_add_u32 v{AD_TR}, v{AD_TR}, v{V_T2}")
        a.e(f"v_mul_u32_u24 v{AD_TR}, 640, v{AD_TR}")
        a.e(f"v_and_b32 v{V_T2}, 3, v{V_LANE}")
        a.e(f"v_lshl_add_u32 v{AD_TR}, v{V_T2}, 3, v{AD_TR}")
        a.e(f"s_sub_u32 s{S_T}, s{S_W}, 2")
        a.e(f"s_lshl_b32 s{S_T}, s{S_T}, 5")
        a.e(f"v_add_u32 v{AD_TR}, s{S_T}, v{AD_TR}")
        a.e(f"v_mov_b32 v{AD_ZERO}, 0")
        a.e(f"s_lshl_b32 s{S_T}, s{S_W}, 10")
        a.e(f"v_mov_b32 v{AD_LW}, s{S_T}")
        a.e(f"s_lshl_b32 s{S_T}, s{S_W}, 2")
        a.e(f"v_mov_b32 v{AD_MW}, s{S_T}")
        a.e(f"s_sub_u32 s{S_T}, s{S_W}, 2")
        a.e(f"s_lshl_b32 s{SX_DMA}, s{S_T}, 10")
        a.e(f"s_lshl_b32 s{S_T}, s{S_T}, 6")
        for k in range(5):
            t = AD_DMA + k
            a.e(f"v_add_u32 v{t}, s{S_T}, v{V_LANE}")
            if k: a.e(f"v_add_u32 v{t}, {384*k}, v{t}")
            a.e(f"v_mul_u32_u24 v{V_T2}, 52429, v{t}")
            a.e(f"v_lshrrev_b32 v{V_T2}, 21, v{V_T2}")
            a.e(f"v_mul_u32_u24 v{V_T2}, 640, v{V_T2}")
            a.e(f"v_lshl_add_u32 v{t}, v{t}, 4, v{V_T2}")
        a.e(f"v_and_b32 v{V_T2}, 3, v{V_LANE}")
        a.e(f"v_lshlrev_b32 v{AD_FW}, 4, v{V_T2}")
        a.e(f"v_lshl_add_u32 v{AD_FW}, v{g16}, 2, v{AD_FW}")
        a.e(f"s_lshl_b32 s{S_T}, s{S_W}, 6")
        a.e(f"v_add_u32 v{AD_FW}, s{S_T}, v{AD_FW}")
        a.e(f"s_lshl_b32 s{SX_REC}, s{S_REC}, 10")
        a.e(f"s_add_u32 s{SX_REC}, s{SX_REC}, {WS_H1}")
        a.e(f"s_lshl_b32 s{SX_H1}, s{S_H}, 3")
        a.e(f"s_lshl_b32 s{S_T}, s{S_W}, 2")
        a.e(f"s_add_u32 s{SX_H1}, s{SX_H1}, s{S_T}")
        a.e(f"s_lshl_b32 s{SX_H1}, s{SX_H1}, 10")
        a.e(f"s_lshl_b32 s{S_T}, s{S_RQ}, 8")
        a.e(f"s_add_u32 s{SX_H1}, s{SX_H1}, s{S_T}")
        a.e(f"s_add_u32 s{SX_H1}, s{SX_H1}, {WS_H1}")
        a.e(f"s_mul_i32 s{SX_ST}, s{S_CH}, 20")
        a.e(f"s_add_u32 s{SX_ST}, s{SX_ST}, s{S_W}")
        a.e(f"s_sub_u32 s{SX_ST}, s{SX_ST}, 2")
        a.e(f"s_lshl_b32 s{SX_ST}, s{SX_ST}, 13")
        a.e(f"s_lshl_b32 s{S_T}, s{S_H}, 2")
        a.e(f"s_add_u32 s{S_T}, s{S_T}, s{S_RQ}")
        a.e(f"s_lshl_b32 s{S_T}, s{S_T}, 6")
        a.e(f"s_add_u32 s{SX_ST}, s{SX_ST}, s{S_T}")
        a.e(f"s_add_u32 s{SX_ST}, s{SX_ST}, {WS_H2}")
        a.e(f"s_add_u32 s{SX_ST+1}, s{SX_ST}, 49152")
        a.e(f"s_add_u32 s{SX_ST+2}, s{SX_ST}, 98304")
        a.e(f"s_add_u32 s{SX_ST3}, s{SX_ST}, 147456")
        a.e(f"s_lshl_b32 s{SX_H2}, s{S_REC}, 13")
        a.e(f"s_lshl_b32 s{S_T}, s{S_W}, 10")
        a.e(f"s_add_u32 s{SX_H2}, s{SX_H2}, s{S_T}")
        a.e(f"s_add_u32 s{SX_H2}, s{SX_H2}, {WS_H2}")
        a.e(f"s_cmp_ge_u32 s{S_REC}, 40")
        a.e(f"s_cselect_b32 s{S_T}, 40, 0")
        a.e(f"s_cselect_b32 s{S_T+1}, 1280, 0")
        a.e(f"s_sub_u32 s{SX_OUT}, s{S_REC}, s{S_T}")
        a.e(f"s_lshl_b32 s{SX_OUT}, s{SX_OUT}, 5")
        a.e(f"s_add_u32 s{SX_OUT}, s{SX_OUT}, s{S_T+1}")

    dmac = [0]
    def wo_dma():
        dmac[0] += 1
        u = dmac[0]
        a.e(f"s_cmp_lt_u32 s{S_W}, 2")
        a.e(f"s_cbranch_scc1 L_nodma{u}")
        for k in range(5):
            a.e(f"s_add_u32 m0, s{SX_DMA}, {L_WO + 6144*k}")
            a.e("s_nop 0")
            a.e(f"buffer_load_dwordx4 v{AD_DMA+k}, {sr(R_WO,4)}, 0 offen{opt.wfl} lds")
        a.label(f"L_nodma{u}")

    def softmax(NS):
        a.c("softmax")
        a.nop(3)
        for ctl in ["quad_perm:[1,0,3,2]", "quad_perm:[2,3,0,1]", "row_half_mirror"]:
            for g in range(NS):
                a.e(f"v_add_f32_dpp v{V_S+g}, v{V_S+g}, v{V_S+g} {ctl} row_mask:0xf bank_mask:0xf")
        round_scores([V_S+g for g in range(NS)], V_ACC)
        M = V_MC
        a.e(f"v_max3_f32 v{M}, v{V_S}, v{V_S+1}, v{V_S+2}")
        k = 3
        while k + 1 < NS:
            a.e(f"v_max3_f32 v{M}, v{M}, v{V_S+k}, v{V_S+k+1}")
            k += 2
        if k < NS:
            a.e(f"v_max_f32 v{M}, v{M}, v{V_S+k}")
        allred_hi(a, "v_max_f32", M, V_T0)
        for g in range(NS):
            a.e(f"v_sub_f32 v{V_S+g}, v{V_S+g}, v{M}")
        for g in range(NS):
            a.e(f"v_mul_f32 v{V_S+g}, 0x{LOG2E:08x}, v{V_S+g}")
        for g in range(NS):
            a.e(f"v_exp_f32 v{V_S+g}, v{V_S+g}")
        a.e("s_nop 0")
        a.e(f"v_add_f32 v{V_L}, v{V_S}, v{V_S+1}")
        for g in range(2, NS):
            a.e(f"v_add_f32 v{V_L}, v{V_L}, v{V_S+g}")
        for k in range(NS//2):
            a.e(f"v_cvt_pk_bf16_f32 v{V_S+k}, v{V_S+2*k}, v{V_S+2*k+1}")
        for r in range(24):
            a.e(f"v_mov_b32 v{V_ACC+r}, 0")

    def v_phase(g0, g1, base=0):
        for g in range(g0, g1):
            a.wait_vm(("V", g))
            forms(a, V_S + g//2, g % 2, V_T0, V_T1)
            pv(a, slot(base + g), V_ACC, V_T0, V_T1)

    S_SOF = S_T + 2
    def issue_task(buf, big):
        if opt.ts: a.e("s_add_u32 s77, s77, 1")
        if big:
            a.e(f"s_mul_i32 s{S_SOF}, s{S_T}, 6144")
            a.e(f"s_add_u32 s{S_SOF}, s{S_SOF}, {POOL_ROW0*384}")
            a.e(f"s_add_u32 s{S_SOF+1}, s{S_SOF}, 3072")
        else:
            a.e(f"s_mul_i32 s{S_SOF}, s{S_T}, 3072")
            a.e(f"s_add_u32 s{S_SOF}, s{S_SOF}, {(POOL_ROW0 + 16*NT1 - 8*NT1)*384}")
        for (R, off) in [(R_K, 0), (R_V, 2)]:
            for gg in range(2 if big else 1):
                for j in range(3):
                    a.e(f"buffer_load_dwordx4 {vr(slot(buf+off+gg)+4*j,4)}, v{V_OFFD}, {sr(R,4)}, s{S_SOF+gg} offen offset:{128*j}{nt if R == R_K else opt.vfl}")
        atomic()

    def read_idx(n_younger):
        a.e(f"s_waitcnt vmcnt({n_younger})")
        a.e(f"v_readfirstlane_b32 s{S_T}, v{V_IDX}")
        a.nop(4)

    def proc_k(buf, big, uid):
        s0, s1 = V_S, V_S + 1
        t = V_S + 2
        a.e(f"v_mov_b32 v{s0}, 0")
        a.e(f"v_mov_b32 v{s1}, 0")
        a.e(f"s_waitcnt vmcnt({7 if big else 4})")
        if big:
            for i in range(12):
                a.e(f"v_dot2c_f32_bf16 v{s0}, v{slot(buf)+i}, v{V_Q+i}")
                a.e(f"v_dot2c_f32_bf16 v{s1}, v{slot(buf+1)+i}, v{V_Q+i}")
            a.nop(3)
            for ctl in ["quad_perm:[1,0,3,2]", "quad_perm:[2,3,0,1]", "row_half_mirror"]:
                a.e(f"v_add_f32_dpp v{s0}, v{s0}, v{s0} {ctl} row_mask:0xf bank_mask:0xf")
                a.e(f"v_add_f32_dpp v{s1}, v{s1}, v{s1} {ctl} row_mask:0xf bank_mask:0xf")
                a.nop(1)
            round_scores([s0, s1], t)
            mn = t + 1
            a.e(f"v_max_f32 v{mn}, v{s0}, v{s1}")
        else:
            for i in range(6):
                a.e(f"v_dot2c_f32_bf16 v{s0}, v{slot(buf)+i}, v{V_Q+i}")
                a.e(f"v_dot2c_f32_bf16 v{s1}, v{slot(buf)+6+i}, v{V_Q+6+i}")
            a.nop(3)
            a.e(f"v_add_f32 v{s0}, v{s0}, v{s1}")
            for ctl in ["quad_perm:[1,0,3,2]", "quad_perm:[2,3,0,1]", "row_half_mirror"]:
                a.nop(2)
                a.e(f"v_add_f32_dpp v{s0}, v{s0}, v{s0} {ctl} row_mask:0xf bank_mask:0xf")
            a.e(f"v_cvt_pk_bf16_f32 v{t}, v{s0}, v{s0}")
            a.e(f"v_and_b32 v{s0}, 0xffff0000, v{t}")
            a.e(f"v_mul_f32 v{s0}, 0x{SCALE:08x}, v{s0}")
            a.e(f"v_cvt_pk_bf16_f32 v{t}, v{s0}, v{s0}")
            a.e(f"v_and_b32 v{s0}, 0xffff0000, v{t}")
            mn = t + 1
            a.e(f"v_mov_b32 v{mn}, v{s0}")
        allred_hi(a, "v_max_f32", mn, t + 2)
        a.e(f"v_cmp_gt_f32 vcc, v{mn}, v{V_MC}")
        a.nop(5)
        a.e("s_cmp_eq_u64 vcc, 0")
        a.e(f"s_cbranch_scc1 L_nors{uid}")
        a.e(f"v_sub_f32 v{t+2}, v{V_MC}, v{mn}")
        a.e(f"v_mul_f32 v{t+2}, 0x{LOG2E:08x}, v{t+2}")
        a.e(f"v_exp_f32 v{t+2}, v{t+2}")
        a.e(f"v_mov_b32 v{V_MC}, v{mn}")
        a.e(f"v_mul_f32 v{V_L}, v{t+2}, v{V_L}")
        for r in range(24):
            a.e(f"v_mul_f32 v{V_ACC+r}, v{t+2}, v{V_ACC+r}")
        a.label(f"L_nors{uid}")
        regs = [s0, s1] if big else [s0]
        for r in regs: a.e(f"v_sub_f32 v{r}, v{r}, v{V_MC}")
        for r in regs: a.e(f"v_mul_f32 v{r}, 0x{LOG2E:08x}, v{r}")
        for r in regs: a.e(f"v_exp_f32 v{r}, v{r}")
        a.e("s_nop 0")
        for r in regs: a.e(f"v_add_f32 v{V_L}, v{V_L}, v{r}")
        if big:
            a.e(f"v_cvt_pk_bf16_f32 v{t}, v{s0}, v{s1}")
            forms(a, t, 0, t+1, t+2)
            forms(a, t, 1, t+3, t+4)
        else:
            a.e(f"v_cvt_pk_bf16_f32 v{t}, v{s0}, v{s0}")
            forms(a, t, 0, t+1, t+2)

    def proc_v(buf, big):
        t = V_S + 2
        pv(a, slot(buf+2), V_ACC, t+1, t+2)
        if big: pv(a, slot(buf+3), V_ACC, t+3, t+4)

    def body(buf, other, big, name, oname):
        a.label(f"L_body{name}")
        proc_k(buf, big, name)
        finish_l()
        read_idx(0)
        a.e(f"s_cmp_lt_u32 s{S_T}, {NT1}")
        a.e(f"s_cbranch_scc1 L_nb{name}")
        a.e(f"s_cmp_lt_u32 s{S_T}, {NT1+NT2}")
        a.e(f"s_cbranch_scc1 L_ns{name}")
        if opt.ts == 1: stamp(a, opt, 2)
        wo_dma()
        proc_v(buf, big)
        a.e("s_branch L_vdone")
        a.label(f"L_nb{name}")
        issue_task(other, True)
        proc_v(buf, big)
        a.e(f"s_branch L_body{oname}B")
        a.label(f"L_ns{name}")
        issue_task(other, False)
        proc_v(buf, big)
        a.e(f"s_branch L_body{oname}S")

    def start_tasks(sfx):
        a.e(f"s_cmp_lt_u32 s{S_T}, {NT1}")
        a.e(f"s_cbranch_scc1 L_sb{sfx}")
        a.e(f"s_cmp_lt_u32 s{S_T}, {NT1+NT2}")
        a.e(f"s_cbranch_scc1 L_ss{sfx}")
        wo_dma()
        finish_l()
        a.e("s_branch L_vdone")
        a.label(f"L_sb{sfx}")
        issue_task(0, True)
        a.e("s_branch L_bodyXB")
        a.label(f"L_ss{sfx}")
        issue_task(0, False)
        a.e("s_branch L_bodyXS")

    a.vm = []
    load_grp("K", 0, 0, thr=False)
    a.e("s_branch L_mainB")
    a.label("L_main")
    a.vm = []
    load_grp("K", 0, 0, thr=False)
    rest_srds()
    srd(R_WS, S_WS, None, WS_SIZE)
    a.e("s_barrier")
    a.e(f"s_cmp_lt_u32 s{S_W}, 4")
    a.e("s_cbranch_scc0 L_mainB")
    if opt.ts: a.e("s_mov_b32 s77, 0")
    pre_q(NSA, "A")
    k_phase(NSA, False)
    softmax(NSA)
    v_phase(0, NSA)
    tail_prep()
    a.e(f"s_lshl_b32 s{S_T}, s{S_W}, 2")
    a.e(f"v_mov_b32 v{V_T2}, s{S_T}")
    a.e(f"s_mov_b32 s{S_SPIN}, 0")
    a.label("L_pwait")
    a.e(f"ds_read_b32 v{V_T1}, v{V_T2} offset:{L_SFLAG}")
    a.e("s_waitcnt lgkmcnt(0)")
    a.e(f"v_cmp_ne_u32 vcc, 1, v{V_T1}")
    a.nop(5)
    a.e("s_cmp_eq_u64 vcc, 0")
    a.e(f"s_cbranch_scc1 L_pok")
    a.e(f"s_add_u32 s{S_SPIN}, s{S_SPIN}, 1")
    a.e(f"s_cmp_gt_u32 s{S_SPIN}, {SPINMAX*16}")
    a.e(f"s_cbranch_scc1 L_pok")
    a.e("s_sleep 8")
    a.e(f"s_branch L_pwait")
    a.label("L_pok")
    a.vm = []
    atomic()
    read_idx(0)
    start_tasks("A")
    a.label("L_mainB")
    a.vm = []
    if opt.ts: a.e("s_mov_b32 s77, 0")
    pre_q(NSB, "B", True)
    k_phase(NSB, True)
    softmax(NSB)
    a.wait_vm("atom")
    a.e(f"v_readfirstlane_b32 s{S_T}, v{V_IDX}")
    a.nop(4)
    vm_save = list(a.vm)
    a.e(f"s_cmp_lt_u32 s{S_T}, {NT1}")
    a.e("s_cbranch_scc0 L_rare")
    issue_task(0, True)
    a.vm = vm_save + ["t"]*13
    v_phase(0, NSB, NSB)
    tail_prep()
    a.e("s_branch L_bodyXB")
    a.label("L_rare")
    a.vm = vm_save
    a.e(f"s_mov_b32 s{S_SOF+2}, s{S_T}")
    v_phase(0, NSB, NSB)
    tail_prep()
    a.e(f"s_mov_b32 s{S_T}, s{S_SOF+2}")
    start_tasks("B")
    body(0, 4, True, "XB", "Y")
    body(4, 0, True, "YB", "X")
    body(0, 4, False, "XS", "Y")
    body(4, 0, False, "YS", "X")
    a.label("L_vdone")
    a.vm = []
    if opt.ts in (1, 8): stamp(a, opt, 3)
    if opt.ts == 4: stamp(a, opt, 1)
    if opt.ts == 9: stamp(a, opt, 3)
    if opt.ts in (5, 6): stamp(a, opt, 1)
    reduce24(a, V_ACC)
    for j in range(3):
        a.e(f"ds_write_b32 v{V_LDSP}, v{V_ACC+8*j} offset:{L_PART+256*j}")
    a.e("s_waitcnt lgkmcnt(0)")
    a.e("s_barrier")
    if opt.ts == 5: stamp(a, opt, 2)
    a.e(f"s_cmp_eq_u32 s{S_W}, 0")
    a.e("s_cbranch_scc0 L_nopub")
    regs = [slot(8) + 4*k for k in range(8)]
    MW = V_S
    a.e(f"ds_read_b128 {vr(MW,4)}, v{AD_ZERO} offset:{L_M}")
    a.e(f"ds_read_b128 {vr(MW+4,4)}, v{AD_ZERO} offset:{L_M+16}")
    for w in range(8):
        a.e(f"ds_read_b128 {vr(regs[w],4)}, v{AD_FIN} offset:{L_PART+1024*w}")
    a.e("s_waitcnt lgkmcnt(8)")
    Mx = V_S + 8
    a.e(f"v_max3_f32 v{Mx}, v{MW}, v{MW+1}, v{MW+2}")
    a.e(f"v_max3_f32 v{Mx+1}, v{MW+3}, v{MW+4}, v{MW+5}")
    a.e(f"v_max3_f32 v{Mx}, v{Mx}, v{MW+6}, v{MW+7}")
    a.e(f"v_max_f32 v{Mx}, v{Mx}, v{Mx+1}")
    a.e(f"v_and_b32 v{Mx}, 0xffffff00, v{Mx}")
    for w in range(8):
        a.e(f"v_sub_f32 v{MW+w}, v{MW+w}, v{Mx}")
    for w in range(8):
        a.e(f"v_exp_f32 v{MW+w}, v{MW+w}")
    Y = V_S + 12
    Y2 = V_ACC
    for w in range(8):
        if w % 2 == 0: a.e(f"s_waitcnt lgkmcnt({6-w})")
        dst = Y if w % 2 == 0 else Y2
        for r in range(4):
            if w < 2:
                a.e(f"v_mul_f32 v{dst+r}, v{MW+w}, v{regs[w]+r}")
            else:
                a.e(f"v_fmac_f32 v{dst+r}, v{MW+w}, v{regs[w]+r}")
    for r in range(4):
        a.e(f"v_add_f32 v{Y+r}, v{Y+r}, v{Y2+r}")
    a.e("s_mov_b32 exec_lo, 0x10001000")
    a.e("s_mov_b32 exec_hi, 0x10001000")
    a.e(f"v_mov_b32 v{Y+1}, v{Mx}")
    a.e("s_mov_b64 exec, -1")
    for r in range(4):
        a.e(f"v_bfi_b32 v{Y+r}, v{V_FF}, v{V_TAG8}, v{Y+r}")
    a.e(f"buffer_store_dwordx4 {vr(Y,4)}, v{AD_L16}, {sr(R_WS,4)}, s{SX_REC} offen sc1")
    if opt.ts == 5: stamp(a, opt, 3)
    a.label("L_nopub")
    if not opt.notail: gen_tail(a, opt)
    if opt.ts:
        a.label("L_ts")
        if opt.ts in (1, 4, 6, 8, 9): stamp(a, opt, 4)
        a.e("s_waitcnt lgkmcnt(0)")
        if opt.ts == 9:
            a.e(f"s_cmp_eq_u32 s{S_W}, 0")
            a.e("s_cbranch_scc0 L_end")
            a.e(f"s_cmp_lt_u32 s{S_REC}, 80")
            a.e("s_cbranch_scc0 L_end")
            a.e(f"s_mov_b32 s{R_X}, s{S_DBG}")
            a.e(f"s_mov_b32 s{R_X+1}, s{S_DBG+1}")
            a.e(f"s_mov_b32 s{R_X+2}, 256")
            a.e(f"s_mov_b32 s{R_X+3}, 0x00020000")
            a.e(f"v_mov_b32 v{V_T0}, 0")
            a.e("s_mov_b64 exec, 1")
            a.e(f"v_mov_b32 v{V_T1}, s{TS_PAIRS[0]}")
            a.e(f"v_not_b32 v{V_T1}, v{V_T1}")
            a.e(f"v_mov_b32 v{V_T2}, s{TS_PAIRS[4]}")
            a.e(f"v_mov_b32 v{V_ACC}, s{TS_PAIRS[3]}")
            a.e(f"v_mov_b32 v{V_ACC+1}, s{TS_PAIRS[2]}")
            a.e(f"buffer_atomic_umax v{V_T1}, v{V_T0}, {sr(R_X,4)}, 0 offen sc1")
            a.e(f"buffer_atomic_umax v{V_T2}, v{V_T0}, {sr(R_X,4)}, 0 offen offset:4 sc1")
            a.e(f"buffer_atomic_umax v{V_ACC}, v{V_T0}, {sr(R_X,4)}, 0 offen offset:8 sc1")
            a.e(f"buffer_atomic_umax v{V_ACC+1}, v{V_T0}, {sr(R_X,4)}, 0 offen offset:12 sc1")
            a.e("s_branch L_end")
        if opt.ts == 8:
            a.e(f"s_mov_b32 s{R_X}, s{S_DBG}")
            a.e(f"s_mov_b32 s{R_X+1}, s{S_DBG+1}")
            a.e(f"s_mov_b32 s{R_X+2}, 256")
            a.e(f"s_mov_b32 s{R_X+3}, 0x00020000")
            a.e(f"v_mov_b32 v{V_T0}, 0")
            a.e("s_mov_b64 exec, 1")
            def amax(sreg, off, inv=False):
                a.e(f"v_mov_b32 v{V_T1}, s{sreg}")
                if inv: a.e(f"v_not_b32 v{V_T1}, v{V_T1}")
                a.e(f"buffer_atomic_umax v{V_T1}, v{V_T0}, {sr(R_X,4)}, 0 offen offset:{off} sc1")
                a.e("s_waitcnt vmcnt(0)")
            amax(TS_PAIRS[0], 0, True)
            amax(TS_PAIRS[0], 4)
            amax(TS_PAIRS[3], 16)
            amax(TS_PAIRS[4], 20)
            amax(TS_PAIRS[3], 28, True)
            a.e(f"s_cmp_eq_u32 s{S_W}, 0")
            a.e("s_cbranch_scc0 L_ts1")
            amax(TS_PAIRS[1], 8)
            amax(TS_PAIRS[2], 12)
            amax(TS_PAIRS[1], 32, True)
            amax(TS_PAIRS[2], 36, True)
            a.e("s_branch L_end")
            a.label("L_ts1")
            amax(TS_PAIRS[1], 24)
            a.e("s_branch L_end")
        for k in range(5):
            a.e(f"v_mov_b32 v{V_ACC+k}, s{TS_PAIRS[k]}")
        a.e(f"s_getreg_b32 s{S_T}, hwreg(HW_REG_XCC_ID)")
        a.e(f"v_mov_b32 v{V_ACC+5}, s{S_T}")
        a.e(f"s_getreg_b32 s{S_T}, hwreg(HW_REG_HW_ID)")
        a.e(f"v_mov_b32 v{V_ACC+6}, s{S_T}")
        a.e(f"v_mov_b32 v{V_ACC+7}, s77")
        a.e(f"s_lshl_b32 s{S_T}, s2, 3")
        a.e(f"s_add_u32 s{S_T}, s{S_T}, s{S_W}")
        a.e(f"s_lshl_b32 s{S_T}, s{S_T}, 6")
        a.e(f"s_add_u32 s{S_T}, s{S_T}, {WS_TS}")
        a.e(f"v_mov_b32 v{V_T0}, 0")
        a.e("s_mov_b64 exec, 1")
        a.e(f"buffer_store_dwordx4 {vr(V_ACC,4)}, v{V_T0}, {sr(R_WS,4)}, s{S_T} offen")
        a.e(f"buffer_store_dwordx4 {vr(V_ACC+4,4)}, v{V_T0}, {sr(R_WS,4)}, s{S_T} offen offset:16")
    return a

def group4(a, m, t):
    tp = "vcc" if t == "vcc" else f"s[{t}:{t+1}]"
    tl = "vcc_lo" if t == "vcc" else f"s{t}"
    a.e(f"s_lshr_b64 {tp}, s[{m}:{m+1}], 1")
    a.e(f"s_or_b64 s[{m}:{m+1}], s[{m}:{m+1}], {tp}")
    a.e(f"s_lshr_b64 {tp}, s[{m}:{m+1}], 2")
    a.e(f"s_or_b64 s[{m}:{m+1}], s[{m}:{m+1}], {tp}")
    a.e(f"s_and_b32 s{m}, s{m}, 0x11111111")
    a.e(f"s_and_b32 s{m+1}, s{m+1}, 0x11111111")
    a.e(f"s_mul_i32 s{m}, s{m}, 15")
    a.e(f"s_mul_i32 s{m+1}, s{m+1}, 15")
    a.e(f"s_or_b32 {tl}, s{m}, s{m+1}")

def tagmask(a, P, dst):
    a.e(f"v_cmp_ne_u32_sdwa s[{dst}:{dst+1}], v{P}, v{V_TAG8} src0_sel:BYTE_0 src1_sel:BYTE_0")
    for r in range(1, 4):
        m = SX_M + 2*(r-1)
        a.e(f"v_cmp_ne_u32_sdwa s[{m}:{m+1}], v{P+r}, v{V_TAG8} src0_sel:BYTE_0 src1_sel:BYTE_0")
    a.nop(4)
    a.e(f"s_or_b64 s[{SX_M}:{SX_M+1}], s[{SX_M}:{SX_M+1}], s[{SX_M+2}:{SX_M+3}]")
    a.e(f"s_or_b64 s[{dst}:{dst+1}], s[{dst}:{dst+1}], s[{SX_M+4}:{SX_M+5}]")
    a.e(f"s_or_b64 s[{dst}:{dst+1}], s[{dst}:{dst+1}], s[{SX_M}:{SX_M+1}]")
    group4(a, dst, SX_M)

def poll(a, opt, name, P, voff, soff, init_lo, init_hi, sleep, fast_thr):
    N = SX_NEED
    ld = f"buffer_load_dwordx4 {vr(P,4)}, v{voff}, {sr(R_WS,4)}, s{soff} offen sc1"
    a.e(f"s_mov_b32 s{N}, {init_lo}")
    a.e(f"s_mov_b32 s{N+1}, {init_hi}")
    a.e(f"s_mov_b32 s{S_SPIN}, 0")
    a.label(f"L_{name}poll")
    a.e(f"s_mov_b64 exec, s[{N}:{N+1}]")
    a.e(ld)
    a.e("s_waitcnt vmcnt(0)")
    tagmask(a, P, N)
    a.e(f"s_cbranch_scc0 L_{name}ok")
    if fast_thr:
        a.e(f"s_bcnt1_i32_b64 s{SX_M}, s[{N}:{N+1}]")
        a.e(f"s_cmp_le_u32 s{SX_M}, {fast_thr}")
        a.e(f"s_cbranch_scc1 L_{name}fast")
    a.e(f"s_add_u32 s{S_SPIN}, s{S_SPIN}, 1")
    a.e(f"s_cmp_gt_u32 s{S_SPIN}, {SPINMAX}")
    a.e(f"s_cbranch_scc1 L_{name}ok")
    if sleep: a.e(f"s_sleep {sleep}")
    a.e(f"s_branch L_{name}poll")
    if fast_thr:
        a.label(f"L_{name}fast")
        a.e(f"s_mov_b64 exec, s[{N}:{N+1}]")
        a.e(ld)
        a.e(f"s_sleep {opt.fsleep}")
        a.e(ld)
        a.e(f"s_sleep {opt.fsleep}")
        a.label(f"L_{name}fl")
        a.e(ld)
        a.e("s_waitcnt vmcnt(2)")
        tagmask(a, P, N)
        a.e(f"s_cbranch_scc0 L_{name}ok")
        a.e(f"s_mov_b64 exec, s[{N}:{N+1}]")
        a.e(f"s_add_u32 s{S_SPIN}, s{S_SPIN}, 1")
        a.e(f"s_cmp_gt_u32 s{S_SPIN}, {SPINMAX*4}")
        a.e(f"s_cbranch_scc0 L_{name}fl")
    a.label(f"L_{name}ok")
    a.e("s_mov_b64 exec, -1")

def gen_tail(a, opt):
    WOA = [[slot(0) + 6*k + 2*t for t in range(3)] for k in range(4)]
    O = slot(2)
    X = V_ACC
    a.c("waves 2..7: wait for the WG's wo DMA, prefetch wo^T A-fragments (tile nt = w-2 + 6k)")
    a.e(f"s_cmp_lt_u32 s{S_W}, 2")
    a.e("s_cbranch_scc1 L_pollers")
    a.e(f"v_mov_b32 v{V_T0}, 1")
    a.e("s_waitcnt vmcnt(0)")
    a.e("s_mov_b64 exec, 1")
    a.e(f"ds_add_u32 v{AD_ZERO}, v{V_T0} offset:{L_DCNT}")
    a.e("s_mov_b64 exec, -1")
    a.e(f"s_mov_b32 s{S_SPIN}, 0")
    a.label("L_dwait")
    a.e(f"ds_read_b32 v{V_T1}, v{AD_ZERO} offset:{L_DCNT}")
    a.e("s_waitcnt lgkmcnt(0)")
    a.e(f"v_cmp_ne_u32 vcc, 6, v{V_T1}")
    a.nop(5)
    a.e("s_cmp_eq_u64 vcc, 0")
    a.e("s_cbranch_scc1 L_dok")
    a.e(f"s_add_u32 s{S_SPIN}, s{S_SPIN}, 1")
    a.e(f"s_cmp_gt_u32 s{S_SPIN}, {SPINMAX*16}")
    a.e("s_cbranch_scc1 L_dok")
    a.e("s_sleep 1")
    a.e("s_branch L_dwait")
    a.label("L_dok")
    for t in range(3):
        for k in range(4):
            a.e(f"ds_read_b64_tr_b16 {vr(WOA[k][t],2)}, v{AD_TR} offset:{L_WO+10240*t+192*k}")
    a.e("s_branch L_h1done")
    a.label("L_pollers")
    a.c("hop 1 gather: waves 0,1 (b = wave): lane l: s = l/16, chunk = l%16")
    poll(a, opt, "h1", O, AD_H1, SX_H1, "-1", "-1", opt.hsleep, opt.f1)
    if opt.ts in (4, 9): stamp(a, opt, 2)
    if opt.ts == 5: stamp(a, opt, 4)
    Ml, Mm = X, X + 1
    a.e(f"v_mov_b32_dpp v{Ml}, v{O} row_newbcast:12 row_mask:0xf bank_mask:0xf")
    a.e(f"v_mov_b32_dpp v{Mm}, v{O+1} row_newbcast:12 row_mask:0xf bank_mask:0xf")
    a.e(f"v_and_b32 v{Mm}, 0xffffff00, v{Mm}")
    Mx = X + 2
    a.e(f"v_mov_b32 v{Mx}, v{Mm}")
    allred_rows(a, "v_max_f32", Mx, X + 3)
    a.e(f"v_sub_f32 v{Mm}, v{Mm}, v{Mx}")
    a.e(f"v_exp_f32 v{Mm}, v{Mm}")
    a.e("s_nop 0")
    a.e(f"v_mul_f32 v{Ml}, v{Mm}, v{Ml}")
    OW = O + 4
    for r in range(4):
        a.e(f"v_mul_f32 v{OW+r}, v{Mm}, v{O+r}")
    a.e(f"v_mov_b32 v{X+3}, v{Ml}")
    a.nop(1)
    a.e(f"v_permlane32_swap_b32 v{OW}, v{OW+2}")
    a.e(f"v_permlane32_swap_b32 v{OW+1}, v{OW+3}")
    a.e(f"v_permlane16_swap_b32 v{Ml}, v{X+3}")
    a.e(f"v_add_f32 v{OW}, v{OW}, v{OW+2}")
    a.e(f"v_add_f32 v{OW+1}, v{OW+1}, v{OW+3}")
    a.e(f"v_add_f32 v{Ml}, v{Ml}, v{X+3}")
    a.e(f"v_mov_b32 v{X+3}, v{Ml}")
    a.nop(1)
    a.e(f"v_permlane16_swap_b32 v{OW}, v{OW+1}")
    a.e(f"v_permlane32_swap_b32 v{Ml}, v{X+3}")
    a.e(f"v_add_f32 v{OW}, v{OW}, v{OW+1}")
    a.e(f"v_add_f32 v{Ml}, v{Ml}, v{X+3}")
    a.e(f"v_rcp_f32 v{Ml}, v{Ml}")
    a.e("s_nop 0")
    a.e(f"v_mul_f32 v{OW}, v{OW}, v{Ml}")
    a.e(f"v_cvt_pk_bf16_f32 v{OW}, v{OW}, v{OW}")
    a.e(f"s_mov_b32 exec_lo, 0x0fff0fff")
    a.e(f"s_mov_b32 exec_hi, 0x0fff0fff")
    a.e(f"ds_write_b16 v{AD_OBW}, v{OW} offset:{L_OBF}")
    a.e("s_mov_b64 exec, -1")
    a.label("L_h1done")
    a.e("s_waitcnt lgkmcnt(0)")
    a.e("s_barrier")
    a.c("out-proj MFMA (waves 2..7)")
    a.e(f"s_cmp_lt_u32 s{S_W}, 2")
    a.e("s_cbranch_scc1 L_nomfma")
    if opt.ts == 5: stamp(a, opt, 3)
    B = [slot(4) + 2*t for t in range(3)]
    for t in range(3):
        a.e(f"ds_read_b64 {vr(B[t],2)}, v{AD_B} offset:{L_OBF+32*t}")
    D = [V_ACC + 4*k for k in range(4)]
    for t in range(3):
        a.e(f"s_waitcnt lgkmcnt({2-t})")
        for k in range(4):
            src = "0" if t == 0 else vr(D[k], 4)
            a.e(f"v_mfma_f32_16x16x16_bf16 {vr(D[k],4)}, {vr(WOA[k][t],2)}, {vr(B[t],2)}, {src}")
    a.e(f"s_mov_b32 exec_lo, 0x00030003")
    a.e(f"s_mov_b32 exec_hi, 0x00030003")
    a.nop(3)
    sts = [SX_ST, SX_ST+1, SX_ST+2, SX_ST3]
    for k in range(4):
        if k == 3:
            a.e(f"s_cmp_lt_u32 s{S_W}, 4")
            a.e("s_cbranch_scc0 L_no3")
        for r in range(4):
            a.e(f"v_bfi_b32 v{D[k]+r}, v{V_FF}, v{V_TAG8}, v{D[k]+r}")
        a.e(f"buffer_store_dwordx4 {vr(D[k],4)}, v{AD_ST}, {sr(R_WS,4)}, s{sts[k]} offen sc1")
    a.label("L_no3")
    a.e("s_mov_b64 exec, -1")
    if opt.ts == 5: stamp(a, opt, 4)
    if opt.ts == 6: stamp(a, opt, 2)
    a.label("L_nomfma")
    if opt.ts == 4: stamp(a, opt, 3)
    a.c("hop 2: all 8 waves of WGs rec < 80; wave k sums producers 16k..16k+15")
    a.e(f"s_cmp_lt_u32 s{S_REC}, 80")
    a.e("s_cbranch_scc0 L_fin")
    P = slot(5)
    poll(a, opt, "h2", P, AD_L16, SX_H2, "-1", "-1", opt.h2sleep, opt.f2)
    if opt.ts == 6: stamp(a, opt, 3)
    PW = P + 4
    for r in range(4):
        a.e(f"v_mov_b32 v{PW+r}, v{P+r}")
    reduce4_rows(a, PW)
    a.nop(2)
    a.e(f"v_add_f32_dpp v{PW}, v{PW}, v{PW} row_ror:8 row_mask:0xf bank_mask:0xf")
    a.nop(2)
    a.e(f"v_add_f32_dpp v{PW}, v{PW}, v{PW} row_ror:4 row_mask:0xf bank_mask:0xf")
    a.e(f"s_mov_b32 exec_lo, 0x000f000f")
    a.e(f"s_mov_b32 exec_hi, 0x000f000f")
    a.e(f"ds_write_b32 v{AD_FW}, v{PW} offset:{L_FIN}")
    a.e("s_mov_b64 exec, -1")
    a.e("s_waitcnt lgkmcnt(0)")
    a.e("s_barrier")
    a.e(f"s_cmp_eq_u32 s{S_W}, 0")
    a.e("s_cbranch_scc0 L_fin")
    a.e(f"v_lshlrev_b32 v{V_T0}, 2, v{V_LANE}")
    F = slot(6)
    for k in range(4):
        a.e(f"ds_read2_b32 {vr(F+2*k,2)}, v{V_T0} offset0:{(L_FIN % 1024)//4 + 32*k} offset1:{(L_FIN % 1024)//4 + 32*k + 16}" if False else
            f"ds_read2_b32 {vr(F+2*k,2)}, v{V_T2} offset0:{32*k} offset1:{32*k+16}")
    a.lines.insert(len(a.lines)-4, f"    v_add_u32 v{V_T2}, {L_FIN}, v{V_T0}")
    a.e(f"v_lshlrev_b32 v{V_T1}, 1, v{V_LANE}")
    a.e("s_waitcnt lgkmcnt(0)")
    a.e(f"v_add_f32 v{F}, v{F}, v{F+1}")
    a.e(f"v_add_f32 v{F+2}, v{F+2}, v{F+3}")
    a.e(f"v_add_f32 v{F+4}, v{F+4}, v{F+5}")
    a.e(f"v_add_f32 v{F+6}, v{F+6}, v{F+7}")
    a.e(f"v_add_f32 v{F}, v{F}, v{F+2}")
    a.e(f"v_add_f32 v{F+4}, v{F+4}, v{F+6}")
    a.e(f"v_add_f32 v{F}, v{F}, v{F+4}")
    a.e(f"v_cvt_pk_bf16_f32 v{F}, v{F}, v{F}")
    a.e("s_mov_b64 exec, 0xffff")
    a.e(f"buffer_store_short v{F}, v{V_T1}, {sr(R_OUT,4)}, s{SX_OUT} offen{opt.outfl}")
    a.e(f"s_cmp_eq_u32 s{S_REC}, 0")
    a.e("s_cbranch_scc0 L_fin2")
    a.e(f"v_mov_b32 v{V_T0}, s{S_TAG}")
    a.e("s_mov_b64 exec, 1")
    a.e(f"buffer_store_dword v{V_T0}, v{AD_ZERO}, {sr(R_WS,4)}, {WS_EPOCH} offen sc1")
    a.label("L_fin2")
    a.e("s_mov_b64 exec, -1")
    a.label("L_fin")

def finish(a):
    a.label("L_end")
    a.e("s_endpgm")
    a.lines.append('.section .rodata,"a"')
    a.lines.append(".p2align 6")
    a.lines.append(f".amdhsa_kernel {KNAME}")
    for l in ["next_free_vgpr 256", "next_free_sgpr 102", "accum_offset 256", "group_segment_fixed_size 0",
              "kernarg_size 64", "user_sgpr_count 2", "user_sgpr_kernarg_segment_ptr 1", "system_sgpr_workgroup_id_x 1"]:
        a.lines.append("  .amdhsa_" + l)
    a.lines.append(".end_amdhsa_kernel")
    return "\n".join(a.lines) + "\n"

def parser():
    p = argparse.ArgumentParser()
    p.add_argument("--nt", type=int, default=1)
    p.add_argument("--ts", type=int, default=0)
    p.add_argument("--grid", type=int, default=256)
    p.add_argument("--qdelay", type=int, default=32)
    p.add_argument("--qsleep", type=int, default=8)
    p.add_argument("--hsleep", type=int, default=1)
    p.add_argument("--h2sleep", type=int, default=1)
    p.add_argument("--fine", type=int, default=5)
    p.add_argument("--tgroups", type=int, default=9)
    p.add_argument("--map", type=int, default=2)
    p.add_argument("--ajoin", type=int, default=1)
    p.add_argument("--vfl", default=" nt")
    p.add_argument("--wfl", default=" nt")
    p.add_argument("--f1", type=int, default=16)
    p.add_argument("--f2", type=int, default=8)
    p.add_argument("--fsleep", type=int, default=5)
    p.add_argument("--outfl", default="")
    p.add_argument("--rot", type=int, default=0)
    p.add_argument("--nsa", type=int, default=16)
    p.add_argument("--nsmall", type=int, default=32)
    p.add_argument("--nsb", type=int, default=8)
    p.add_argument("--cstride", type=int, default=16640)
    p.add_argument("--noq", type=int, default=0)
    p.add_argument("--nowo", type=int, default=0)
    p.add_argument("--notail", type=int, default=0)
    p.add_argument("-o", default="k.s")
    return p

if __name__ == "__main__":
    opt = parser().parse_args()
    setcfg(opt.nsa, opt.nsb, opt.nsmall)
    a = gen(opt)
    open(opt.o, "w").write(finish(a))
    print("wrote", opt.o, len(a.lines), "lines")
```

```python
import sys, argparse, struct

KNAME = "standalone__sliding_block_cached__decode_kernel"

def f32bits(x):
    return struct.unpack("<I", struct.pack("<f", x))[0]

class A:
    def __init__(self):
        self.lines = []
        self.vm = []
    def e(self, s):
        self.lines.append("    " + s)
    def c(self, s):
        self.lines.append("    ; " + s)
    def label(self, n):
        self.lines.append(n + ":")
    def vmem(self, s, tag=None):
        self.e(s)
        self.vm.append(tag)
        assert len(self.vm) <= 63, ("too many outstanding", len(self.vm))
    def throttle(self, D, add=1):
        if D and len(self.vm) + add > D:
            n = D - add
            self.e(f"s_waitcnt vmcnt({n})")
            self.vm = self.vm[len(self.vm) - n:] if n > 0 else []
    def wait_vm(self, tag):
        if tag not in self.vm:
            return
        idx = max(i for i, t in enumerate(self.vm) if t == tag)
        n = len(self.vm) - 1 - idx
        self.e(f"s_waitcnt vmcnt({n})")
        self.vm = self.vm[idx + 1:]
    def nop(self, n):
        while n > 0:
            k = min(n, 16)
            self.e(f"s_nop {k-1}")
            n -= k

def vr(a, n=1):
    return f"v{a}" if n == 1 else f"v[{a}:{a+n-1}]"
def sr(a, n=1):
    return f"s{a}" if n == 1 else f"s[{a}:{a+n-1}]"

V_TID, V_LANE, V_OFFKV, V_OFFW = 0, 1, 2, 3
V_X = 4
V_TAG8 = 3
V_FF = 4
V_LDSP = 5
V_L = 6
V_MC = 7
V_OFFD = 8
V_T0, V_T1, V_T2 = 9, 10, 11
V_Q = 12
V_S = 24
V_ACC = 40
V_RING = 64

S_X, S_K, S_V, S_WQ, S_WO, S_OUT, S_DBG, S_WS = 4, 6, 8, 10, 12, 14, 16, 18
R_K, R_V, R_WQ, R_X, R_WO, R_WS, R_OUT = 20, 24, 28, 32, 36, 40, 44
S_EPOCH = 3
S_TAG = 48
S_RQ, S_CH = 49, 50
S_CNT = 51
S_GOFF = 52
S_WOFF = 68
S_H, S_I, S_B, S_W = 78, 79, 80, 81
S_T = 82
S_REC = 94
S_SPIN = 95
TS_PAIRS = [96, 98, 100, 90, 92]

L_WO = 0
L_PART = 32768
L_QBF = 40960
L_OBF = 41472
L_M = 41984
L_FLAG = 42048
L_SFLAG = 42064
L_TAG = 42112
L_DCNT = 42048 + 32
L_SIZE = 43008

WS_EPOCH = 0
WS_H1 = 0x100000
WS_H2 = 0x200000
WS_QX = 0x300000
WS_TS = 0x400000
WS_CNT = 0x600000
CNT_STRIDE = 16640
NSA = 16
NSB = 8
def setcfg(nsa, nsb, nsmall=32):
    global NSA, NSB, STAT_ROWS, POOL_ROW0, NTASK
    NSA, NSB = nsa, nsb
    STAT_ROWS = 3*8*NSA + 5*8*NSB
    POOL_ROW0 = 4*STAT_ROWS
    global NT1, NT2
    pool = 4096 - POOL_ROW0
    NT2 = nsmall
    assert (pool - 8*NT2) % 16 == 0
    NT1 = (pool - 8*NT2)//16
    NTASK = NT1 + NT2
setcfg(16, 8)
WS_SIZE = 1610612736

AD_FIN, AD_L16, AD_H1, AD_OBW, AD_B, AD_ST, AD_TR, AD_ZERO, AD_FW = [V_RING + 12*15 + k for k in range(9)]
AD_DMA = V_RING + 12*14
AD_LW, AD_MW = V_RING + 12*14 + 5, V_RING + 12*14 + 6
SX_DMA = 59
SX_ST3 = 50
SX_REC, SX_H1, SX_ST, SX_H2, SX_OUT, SX_NEED, SX_M = 52, 53, 54, 57, 58, 60, 62
L_FIN = L_PART
LOG2E = f32bits(1.4426950408889634)
SCALE = f32bits(192 ** -0.5)
SPINMAX = 1 << 17

def slot(g):
    return V_RING + 12 * g

def reduce24(a, acc):
    a.nop(3)
    for j in range(3):
        for e in range(4):
            a.e(f"v_permlane32_swap_b32 v{acc+8*j+e}, v{acc+8*j+e+4}")
    for j in range(3):
        for e in range(4):
            a.e(f"v_add_f32 v{acc+8*j+e}, v{acc+8*j+e}, v{acc+8*j+e+4}")
    a.nop(2)
    for j in range(3):
        for e in range(2):
            a.e(f"v_permlane16_swap_b32 v{acc+8*j+e}, v{acc+8*j+e+2}")
    for j in range(3):
        for e in range(2):
            a.e(f"v_add_f32 v{acc+8*j+e}, v{acc+8*j+e}, v{acc+8*j+e+2}")
    a.nop(2)
    for j in range(3):
        a.e(f"v_add_f32_dpp v{acc+8*j}, v{acc+8*j}, v{acc+8*j} row_ror:8 row_mask:0xf bank_mask:0x3")
    for j in range(3):
        a.e(f"v_add_f32_dpp v{acc+8*j}, v{acc+8*j+1}, v{acc+8*j+1} row_ror:8 row_mask:0xf bank_mask:0xc")

def allred_rows(a, op, v, t):
    a.e(f"v_mov_b32 v{t}, v{v}")
    a.nop(2)
    a.e(f"v_permlane16_swap_b32 v{v}, v{t}")
    a.e(f"{op} v{v}, v{v}, v{t}")
    a.e(f"v_mov_b32 v{t}, v{v}")
    a.nop(2)
    a.e(f"v_permlane32_swap_b32 v{v}, v{t}")
    a.e(f"{op} v{v}, v{v}, v{t}")

def allred_hi(a, op, v, t):
    a.nop(2)
    a.e(f"{op}_dpp v{v}, v{v}, v{v} row_ror:8 row_mask:0xf bank_mask:0xf")
    allred_rows(a, op, v, t)

def reduce4_rows(a, P):
    a.nop(2)
    a.e(f"v_permlane32_swap_b32 v{P}, v{P+2}")
    a.e(f"v_permlane32_swap_b32 v{P+1}, v{P+3}")
    a.e(f"v_add_f32 v{P}, v{P}, v{P+2}")
    a.e(f"v_add_f32 v{P+1}, v{P+1}, v{P+3}")
    a.nop(2)
    a.e(f"v_permlane16_swap_b32 v{P}, v{P+1}")
    a.e(f"v_add_f32 v{P}, v{P}, v{P+1}")

def stamp(a, opt, k):
    if opt.ts:
        p = TS_PAIRS[k]
        a.e(f"s_memrealtime s[{p}:{p+1}]")

def forms(a, src, odd, lo, hi):
    if not odd:
        a.e(f"v_and_b32 v{lo}, 0xffff, v{src}")
        a.e(f"v_lshlrev_b32 v{hi}, 16, v{src}")
    else:
        a.e(f"v_lshrrev_b32 v{lo}, 16, v{src}")
        a.e(f"v_and_b32 v{hi}, 0xffff0000, v{src}")

def pv(a, base, acc, lo, hi):
    for j in range(3):
        for i in range(4):
            w = base + 4*j + i
            a.e(f"v_dot2c_f32_bf16 v{acc+8*j+2*i}, v{w}, v{lo}")
            a.e(f"v_dot2c_f32_bf16 v{acc+8*j+2*i+1}, v{w}, v{hi}")

def tagcheck(a, P, t, dst):
    a.e(f"v_xor_b32 v{t}, v{P}, v{V_TAG8}")
    a.e(f"v_xor_b32 v{t+1}, v{P+1}, v{V_TAG8}")
    a.e(f"v_xor_b32 v{t+2}, v{P+2}, v{V_TAG8}")
    a.e(f"v_xor_b32 v{t+3}, v{P+3}, v{V_TAG8}")
    a.e(f"v_or3_b32 v{t}, v{t}, v{t+1}, v{t+2}")
    a.e(f"v_or_b32 v{t}, v{t}, v{t+3}")
    a.e(f"v_and_b32 v{t}, v{V_FF}, v{t}")
    a.e(f"v_cmp_ne_u32 {dst}, 0, v{t}")

def gen(opt):
    a = A()
    nt = " nt" if opt.nt else ""
    hdr = """; Fused sliding-window decode attention for gfx950, one launch, 256 workgroups (one per CU) x 8 waves.
;                  (16-byte granules {3 floats, 32-bit launch tag}), gathers the 8 partials of its (h,b), rounds q to bf16.
"""
    a.lines += hdr.rstrip("\n").split("\n")
    a.lines.append(f"; @launch grid=({opt.grid},1,1) block=(512,1,1) lds={L_SIZE}")
    a.lines.append('.amdgcn_target "amdgcn-amd-amdhsa--gfx950"')
    a.lines.append(".text")
    a.lines.append(f".globl {KNAME}")
    a.lines.append(".p2align 8")
    a.lines.append(f".type {KNAME},@function")
    a.label(KNAME)
    a.e("s_cmp_ge_u32 s2, 256")
    a.e("s_cbranch_scc1 L_end")
    a.e("s_load_dwordx16 s[4:19], s[0:1], 0")
    stamp(a, opt, 0)
    if opt.map == 1:
        a.e(f"s_lshr_b32 s{S_H}, s2, 3")
        a.e(f"s_and_b32 s{S_I}, s2, 7")
    elif opt.map == 3:
        a.e(f"s_lshr_b32 s{S_H}, s2, 3")
        a.e(f"s_and_b32 s{S_T}, s2, 7")
        a.e(f"s_lshr_b32 s{S_T+1}, s{S_T}, 2")
        a.e(f"s_xor_b32 s{S_T+1}, s{S_T+1}, s{S_T}")
        a.e(f"s_and_b32 s{S_T+1}, s{S_T+1}, 1")
        a.e(f"s_lshl_b32 s{S_T+1}, s{S_T+1}, 2")
        a.e(f"s_lshr_b32 s{S_T}, s{S_T}, 1")
        a.e(f"s_add_u32 s{S_I}, s{S_T}, s{S_T+1}")
    elif opt.map == 2:
        a.e(f"s_lshr_b32 s{S_H}, s2, 3")
        a.e(f"s_and_b32 s{S_T}, s2, 7")
        a.e(f"s_bcnt1_i32_b32 s{S_T+1}, s{S_T}")
        a.e(f"s_and_b32 s{S_T+1}, s{S_T+1}, 1")
        a.e(f"s_lshl_b32 s{S_T+1}, s{S_T+1}, 2")
        a.e(f"s_lshr_b32 s{S_T}, s{S_T}, 1")
        a.e(f"s_add_u32 s{S_I}, s{S_T}, s{S_T+1}")
    else:
        a.e(f"s_and_b32 s{S_T}, s2, 7")
        a.e(f"s_lshr_b32 s{S_T+1}, s2, 3")
        a.e(f"s_and_b32 s{S_T+2}, s{S_T+1}, 3")
        a.e(f"s_lshl_b32 s{S_T+2}, s{S_T+2}, 3")
        a.e(f"s_add_u32 s{S_H}, s{S_T}, s{S_T+2}")
        a.e(f"s_lshr_b32 s{S_I}, s{S_T+1}, 2")
    a.e(f"s_lshr_b32 s{S_B}, s{S_I}, 2")
    a.e(f"s_lshl_b32 s{S_REC}, s{S_H}, 3")
    a.e(f"s_add_u32 s{S_REC}, s{S_REC}, s{S_I}")
    a.e(f"s_lshr_b32 s{S_RQ}, s{S_I}, 1")
    a.e(f"s_and_b32 s{S_CH}, s{S_I}, 1")
    a.e(f"v_and_b32 v{V_LANE}, 63, v{V_TID}")
    a.e(f"v_lshrrev_b32 v{V_T0}, 6, v{V_TID}")
    a.e(f"v_lshrrev_b32 v{V_T1}, 3, v{V_LANE}")
    a.e(f"v_and_b32 v{V_T2}, 7, v{V_LANE}")
    a.e(f"v_readfirstlane_b32 s{S_W}, v{V_T0}")
    a.e(f"v_lshlrev_b32 v{V_T2}, 4, v{V_T2}")
    a.e(f"v_mul_u32_u24 v{V_OFFKV}, 384, v{V_T1}")
    a.e(f"v_add_u32 v{V_OFFKV}, v{V_OFFKV}, v{V_T2}")
    a.e(f"v_mul_u32_u24 v{V_OFFW}, {10*12288}, v{V_T1}")
    a.e(f"v_add_u32 v{V_OFFW}, v{V_OFFW}, v{V_T2}")
    a.e(f"v_mul_u32_u24 v{V_T0}, 20, v{V_T1}")
    a.e(f"v_mov_b32 v{V_T1}, 0")
    a.e(f"v_lshlrev_b32 v{V_T2}, 2, v{V_LANE}")
    a.e("s_mov_b64 exec, 0xffff")
    a.e(f"ds_write_b32 v{V_T2}, v{V_T1} offset:{L_FLAG}")
    a.e("s_mov_b64 exec, -1")
    if not opt.rot:
        for g in range(16):
            a.e(f"s_mov_b32 s{S_GOFF+g}, {3072*g}")
    for g in range(10):
        a.e(f"s_mov_b32 s{S_WOFF+g}, {12288*g}")
    if opt.rot:
        a.e(f"s_sub_u32 s{S_T}, s{S_W}, 1")
        a.e(f"s_cmp_lt_u32 s{S_T}, 3")
        a.e(f"s_cselect_b32 s{S_T+1}, {NSA-1}, {NSB-1}")
        a.e(f"s_mul_i32 s{S_T+2}, s{S_H}, {opt.rot}")
        a.e(f"s_lshr_b32 s{S_T+3}, s{S_I}, 2")
        a.e(f"s_mul_i32 s{S_T+3}, s{S_T+3}, 5")
        a.e(f"s_add_u32 s{S_T+2}, s{S_T+2}, s{S_T+3}")
        for g in range(16):
            a.e(f"s_add_u32 s{S_T}, s{S_T+2}, {g}")
            a.e(f"s_and_b32 s{S_T}, s{S_T}, s{S_T+1}")
            a.e(f"s_mul_i32 s{S_GOFF+g}, s{S_T}, 3072")
    a.e(f"v_mov_b32 v{V_OFFD}, v{V_OFFKV}")
    a.e(f"s_sub_u32 s{S_T}, s{S_W}, 1")
    a.e(f"s_mul_i32 s{S_T}, s{S_T}, {8*NSA*384}")
    a.e(f"s_sub_u32 s{S_T+1}, s{S_W}, 3")
    a.e(f"s_max_i32 s{S_T+1}, s{S_T+1}, 0")
    a.e(f"s_mul_i32 s{S_T+1}, s{S_T+1}, {8*NSB*384}")
    a.e(f"s_add_u32 s{S_T+1}, s{S_T+1}, {3*8*NSA*384}")
    a.e(f"s_sub_u32 s{S_T+2}, s{S_W}, 1")
    a.e(f"s_cmp_lt_u32 s{S_T+2}, 3")
    a.e(f"s_cselect_b32 s{S_T}, s{S_T}, s{S_T+1}")
    a.e(f"s_and_b32 s{S_T+1}, s{S_I}, 3")
    a.e(f"s_mul_i32 s{S_T+1}, s{S_T+1}, {STAT_ROWS*384}")
    a.e(f"s_add_u32 s{S_T}, s{S_T}, s{S_T+1}")
    a.e(f"v_add_u32 v{V_OFFKV}, s{S_T}, v{V_OFFKV}")
    a.e(f"s_mul_i32 s{S_T+2}, s{S_I}, 160")
    a.e(f"v_add_u32 v{V_T0}, s{S_T+2}, v{V_T0}")
    a.e(f"s_lshl_b32 s{S_T}, s{S_B}, 5")
    a.e(f"s_add_u32 s{S_T}, s{S_T}, s{S_H}")
    a.e(f"s_mul_i32 s{S_CNT}, s{S_T}, {opt.cstride}")
    a.e(f"s_add_u32 s{S_CNT}, s{S_CNT}, {WS_CNT}")
    a.e(f"s_mul_i32 s{S_T}, s{S_T}, 6291456")
    a.e(f"s_add_u32 s{S_T}, s{S_T}, 4718592")
    a.e(f"s_mul_i32 s{S_T+1}, s{S_H}, 384")
    a.e(f"s_mul_i32 s{S_T+3}, s{S_I}, {80*12288}")
    a.e(f"s_add_u32 s{S_T+1}, s{S_T+1}, s{S_T+3}")
    a.e(f"s_mul_i32 s{S_T+2}, s{S_H}, {192*1280}")
    a.e(f"s_mul_i32 s{S_T+3}, s{S_RQ}, {48*1280}")
    a.e(f"s_add_u32 s{S_T+2}, s{S_T+2}, s{S_T+3}")
    a.e(f"s_mul_i32 s{S_T+3}, s{S_CH}, 640")
    a.e(f"s_add_u32 s{S_T+2}, s{S_T+2}, s{S_T+3}")
    a.e("s_waitcnt lgkmcnt(0)")
    def srd(R, P, off_s, nbytes):
        if off_s is None:
            a.e(f"s_mov_b32 s{R}, s{P}")
            a.e(f"s_mov_b32 s{R+1}, s{P+1}")
        else:
            a.e(f"s_add_u32 s{R}, s{P}, s{off_s}")
            a.e(f"s_addc_u32 s{R+1}, s{P+1}, 0")
        a.e(f"s_mov_b32 s{R+2}, {nbytes}")
        a.e(f"s_mov_b32 s{R+3}, 0x00020000")
    srd(R_K, S_K, S_T, 4096*384)
    def rest_srds():
        srd(R_V, S_V, S_T, 4096*384)
        srd(R_WO, S_WO, S_T+2, 47*1280+640)
        srd(R_OUT, S_OUT, None, 2560)

    def load_grp(kind, g, sl, thr=None):
        R, voff, soff, fl = {"K": (R_K, V_OFFKV, S_GOFF + g, nt), "V": (R_V, V_OFFKV, S_GOFF + g, opt.vfl),
                             "W": (R_WQ, V_OFFW, S_WOFF + g, opt.wfl)}[kind]
        for j in range(3):
            if thr is None: thr = (kind == "K" and g < opt.tgroups)
            if opt.fine and thr: a.throttle(opt.fine, 1)
            a.vmem(f"buffer_load_dwordx4 {vr(slot(sl)+4*j,4)}, v{voff}, {sr(R,4)}, s{soff} offen offset:{128*j}{fl}", (kind, g))

    a.e(f"s_cmp_eq_u32 s{S_W}, 0")
    a.e("s_cbranch_scc0 L_main")
    a.c("wave 0: q projection partial + exchange")
    srd(R_WS, S_WS, None, WS_SIZE)
    srd(R_X, S_X, None, 2560)
    srd(R_WQ, S_WQ, S_T+1, 79*12288+384)
    if opt.noq:
        a.e(f"s_and_b32 s{S_T+4}, s{S_I}, 3")
        a.e(f"s_cmp_eq_u32 s{S_T+4}, 0")
        a.e("s_cbranch_scc0 L_noinit0")
        a.e(f"v_mov_b32 v{V_T1}, 0")
        a.e("s_mov_b64 exec, 1")
        a.e(f"buffer_store_dword v{V_T1}, v{V_T1}, {sr(R_WS,4)}, s{S_CNT} offen sc1")
        a.e("s_mov_b64 exec, -1")
        a.e("s_waitcnt vmcnt(0)")
        a.label("L_noinit0")
        a.e(f"s_sleep {opt.noq}")
        a.e(f"v_mov_b32 v{V_T0}, 0")
        a.e(f"v_mov_b32 v{V_T2}, 1")
        a.e("s_mov_b64 exec, 1")
        a.e(f"ds_write_b32 v{V_T0}, v{V_T2} offset:{L_FLAG}")
        a.e("s_mov_b64 exec, -1")
        stamp(a, opt, 1)
        stamp(a, opt, 2)
        a.e("s_branch L_mainB")
    VE = slot(14)
    a.e(f"v_mov_b32 v{VE+1}, 0")
    a.vmem(f"buffer_load_dword v{VE}, v{VE+1}, {sr(R_WS,4)}, {WS_EPOCH} offen sc1", "x")
    X1 = slot(10)
    F1 = slot(10) + 6
    ACC1 = slot(11)
    a.vmem(f"buffer_load_dwordx4 {vr(slot(13),4)}, v{V_T0}, {sr(R_X,4)}, 0 offen", "x")
    X0 = slot(13)
    a.vmem(f"buffer_load_dword v{X0+4}, v{V_T0}, {sr(R_X,4)}, 0 offen offset:16", "x")
    a.vmem(f"buffer_load_dwordx4 {vr(X1,4)}, v{V_T0}, {sr(R_X,4)}, 0 offen offset:1280", "x")
    a.vmem(f"buffer_load_dword v{X1+4}, v{V_T0}, {sr(R_X,4)}, 0 offen offset:1296", "x")
    a.e(f"s_and_b32 s{S_T+4}, s{S_I}, 3")
    a.e(f"s_cmp_eq_u32 s{S_T+4}, 0")
    a.e("s_cbranch_scc0 L_noinit")
    a.e(f"v_mov_b32 v{V_T1}, 0")
    a.e("s_mov_b64 exec, 1")
    a.e(f"buffer_store_dword v{V_T1}, v{V_T1}, {sr(R_WS,4)}, s{S_CNT} offen sc1")
    a.e("s_mov_b64 exec, -1")
    a.label("L_noinit")
    for g in range(10):
        load_grp("W", g, g)
        if g == 1:
            rest_srds()
            a.e("s_barrier")
    for r in range(24):
        a.e(f"v_mov_b32 v{V_ACC+r}, 0")
        a.e(f"v_mov_b32 v{ACC1+r}, 0")
    for g in range(10):
        a.wait_vm(("W", g))
        forms(a, X0 + g//2, g % 2, V_T0, V_T1)
        forms(a, X1 + g//2, g % 2, F1, F1+1)
        pv(a, slot(g), V_ACC, V_T0, V_T1)
        pv(a, slot(g), ACC1, F1, F1+1)
    reduce24(a, V_ACC)
    reduce24(a, ACC1)
    a.e(f"v_readfirstlane_b32 s{S_EPOCH}, v{VE}")
    a.nop(4)
    a.e(f"s_add_u32 s{S_TAG}, s{S_EPOCH}, 1")
    G0, G1 = V_Q, V_Q + 4
    for j in range(3):
        a.e(f"v_mov_b32 v{G0+j}, v{V_ACC+8*j}")
        a.e(f"v_mov_b32 v{G1+j}, v{ACC1+8*j}")
    a.e(f"v_mov_b32 v{G0+3}, s{S_TAG}")
    a.e(f"v_mov_b32 v{G1+3}, s{S_TAG}")
    a.e(f"v_lshlrev_b32 v{V_T1}, 4, v{V_LANE}")
    a.e(f"s_lshl_b32 s{S_T}, s{S_H}, 14")
    a.e(f"s_add_u32 s{S_T}, s{S_T}, {WS_QX}")
    a.e(f"s_lshl_b32 s{S_T+1}, s{S_I}, 10")
    a.e(f"s_add_u32 s{S_T+1}, s{S_T+1}, s{S_T}")
    a.e(f"s_add_u32 s{S_T+2}, s{S_T+1}, 8192")
    a.e(f"buffer_store_dwordx4 {vr(G0,4)}, v{V_T1}, {sr(R_WS,4)}, s{S_T+1} offen sc1")
    a.e(f"buffer_store_dwordx4 {vr(G1,4)}, v{V_T1}, {sr(R_WS,4)}, s{S_T+2} offen sc1")
    if opt.ts in (1, 8): stamp(a, opt, 1)
    a.e(f"s_lshl_b32 s{S_T+1}, s{S_B}, 13")
    a.e(f"s_add_u32 s{S_T}, s{S_T}, s{S_T+1}")
    a.e(f"s_add_u32 s{S_T+1}, s{S_T}, 4096")
    GA = slot(0)
    QM = S_GOFF
    QM = S_WOFF
    qmask = [68, 70, 72, 74, 76, 84, 86, 88]
    for i in range(8):
        a.e(f"s_mov_b64 s[{qmask[i]}:{qmask[i]+1}], -1")
    a.e(f"s_mov_b32 s{S_SPIN}, 0")
    if opt.qdelay: a.e(f"s_sleep {opt.qdelay}")
    a.label("L_qpoll")
    for i in range(8):
        a.e(f"s_mov_b64 exec, s[{qmask[i]}:{qmask[i]+1}]")
        a.e(f"s_cbranch_execz L_qs{i}")
        a.e(f"buffer_load_dwordx4 {vr(GA+4*i,4)}, v{V_T1}, {sr(R_WS,4)}, s{S_T + (i//4)} offen offset:{1024*(i%4)} sc1")
        a.label(f"L_qs{i}")
    a.e("s_mov_b64 exec, -1")
    a.e("s_waitcnt vmcnt(0)")
    for i in range(8):
        a.e(f"v_cmp_ne_u32 s[{qmask[i]}:{qmask[i]+1}], s{S_TAG}, v{GA+4*i+3}")
    a.nop(5)
    for i in range(8):
        group4(a, qmask[i], "vcc")
    a.e(f"s_or_b64 vcc, s[{qmask[0]}:{qmask[0]+1}], s[{qmask[1]}:{qmask[1]+1}]")
    for i in range(2, 8):
        a.e(f"s_or_b64 vcc, vcc, s[{qmask[i]}:{qmask[i]+1}]")
    a.e("s_cbranch_scc0 L_qok")
    a.e(f"s_add_u32 s{S_SPIN}, s{S_SPIN}, 1")
    a.e(f"s_cmp_gt_u32 s{S_SPIN}, {SPINMAX}")
    a.e("s_cbranch_scc1 L_qok")
    if opt.qsleep: a.e(f"s_sleep {opt.qsleep}")
    a.e("s_branch L_qpoll")
    a.label("L_qok")
    if opt.ts in (1, 8): stamp(a, opt, 2)
    for j in range(3):
        a.e(f"v_add_f32 v{GA+j}, v{GA+j}, v{GA+4+j}")
        a.e(f"v_add_f32 v{GA+8+j}, v{GA+8+j}, v{GA+12+j}")
        a.e(f"v_add_f32 v{GA+16+j}, v{GA+16+j}, v{GA+20+j}")
        a.e(f"v_add_f32 v{GA+24+j}, v{GA+24+j}, v{GA+28+j}")
    for j in range(3):
        a.e(f"v_add_f32 v{GA+j}, v{GA+j}, v{GA+8+j}")
        a.e(f"v_add_f32 v{GA+16+j}, v{GA+16+j}, v{GA+24+j}")
    for j in range(3):
        a.e(f"v_add_f32 v{GA+j}, v{GA+j}, v{GA+16+j}")
    for j in range(3):
        a.e(f"v_cvt_pk_bf16_f32 v{GA+j}, v{GA+j}, v{GA+j}")
    a.e(f"v_and_b32 v{V_T0}, 7, v{V_LANE}")
    a.e(f"v_lshlrev_b32 v{V_T0}, 4, v{V_T0}")
    a.e(f"v_lshrrev_b32 v{V_T2}, 3, v{V_LANE}")
    a.e(f"v_lshl_add_u32 v{V_T0}, v{V_T2}, 1, v{V_T0}")
    for j in range(3):
        a.e(f"ds_write_b16 v{V_T0}, v{GA+j} offset:{L_QBF+128*j}")
    a.e(f"v_mov_b32 v{V_T0}, 0")
    a.e(f"v_mov_b32 v{V_T1}, s{S_TAG}")
    a.e(f"v_mov_b32 v{V_T2}, 1")
    a.e("s_mov_b64 exec, 1")
    a.e(f"ds_write_b32 v{V_T0}, v{V_T1} offset:{L_TAG}")
    a.e("s_waitcnt lgkmcnt(0)")
    a.e(f"ds_write_b32 v{V_T0}, v{V_T2} offset:{L_FLAG}")
    a.e("s_mov_b64 exec, -1")
    a.vm = []
    def pre_q(NS, sfx, dyn=False):
        a.vm = [("K", 0)]*3
        for g in range(1, NS):
            load_grp("K", g, g)
        if dyn:
            for g in range(NS - 4):
                load_grp("V", g, NS + g, thr=(NS + g < opt.tgroups))
        a.e(f"v_and_b32 v{V_T0}, 7, v{V_LANE}")
        a.e(f"v_lshlrev_b32 v{V_T1}, 5, v{V_T0}")
        a.e(f"v_lshrrev_b32 v{V_T2}, 3, v{V_LANE}")
        a.e(f"v_lshl_add_u32 v{V_T1}, v{V_T2}, 2, v{V_T1}")
        a.e(f"s_lshl_b32 s{S_T}, s{S_W}, 10")
        a.e(f"v_add_u32 v{V_LDSP}, s{S_T}, v{V_T1}")
        for g in range(NS):
            a.e(f"v_mov_b32 v{V_S+g}, 0")
        if opt.ts in (1, 8):
            a.e(f"s_cmp_eq_u32 s{S_W}, 0")
            a.e(f"s_cbranch_scc1 L_nost0{sfx}")
            stamp(a, opt, 1)
            a.label(f"L_nost0{sfx}")
        a.e(f"v_mov_b32 v{V_T2}, 0")
        a.e(f"s_mov_b32 s{S_SPIN}, 0")
        a.label(f"L_qwait{sfx}")
        a.e(f"ds_read_b32 v{V_T1}, v{V_T2} offset:{L_FLAG}")
        a.e("s_waitcnt lgkmcnt(0)")
        a.e(f"v_cmp_ne_u32 vcc, 1, v{V_T1}")
        a.nop(5)
        a.e("s_cmp_eq_u64 vcc, 0")
        a.e(f"s_cbranch_scc1 L_qready{sfx}")
        a.e(f"s_add_u32 s{S_SPIN}, s{S_SPIN}, 1")
        a.e(f"s_cmp_gt_u32 s{S_SPIN}, {SPINMAX*16}")
        a.e(f"s_cbranch_scc1 L_qready{sfx}")
        a.e("s_sleep 4")
        a.e(f"s_branch L_qwait{sfx}")
        a.label(f"L_qready{sfx}")
        a.e(f"v_lshlrev_b32 v{V_T0}, 4, v{V_T0}")
        for j in range(3):
            a.e(f"ds_read_b128 {vr(V_Q+4*j,4)}, v{V_T0} offset:{L_QBF+128*j}")
        a.e(f"ds_read_b32 v{V_TAG8}, v{V_T2} offset:{L_TAG}")
        a.e(f"v_mov_b32 v{V_FF}, 0xff")
        a.e("s_waitcnt lgkmcnt(0)")
        a.e(f"v_readfirstlane_b32 s{S_TAG}, v{V_TAG8}")
        a.e(f"v_and_b32 v{V_TAG8}, 0xff, v{V_TAG8}")
        if dyn:
            atomic()
            for g in range(NS - 4, NS):
                load_grp("V", g, NS + g)
            a.e(f"s_lshl_b32 s{S_T}, s{S_W}, 2")
            a.e(f"v_mov_b32 v{V_T1}, s{S_T}")
            a.e(f"v_mov_b32 v{V_T2}, 1")
            a.e("s_mov_b64 exec, 1")
            a.e(f"ds_write_b32 v{V_T1}, v{V_T2} offset:{L_SFLAG-16}")
            a.e("s_mov_b64 exec, -1")
        a.e("s_waitcnt lgkmcnt(0)")
        if opt.ts in (1, 8):
            a.e(f"s_cmp_eq_u32 s{S_W}, 0")
            a.e(f"s_cbranch_scc1 L_nost{sfx}")
            stamp(a, opt, 2)
            a.label(f"L_nost{sfx}")

    V_IDX = V_T2 + 0
    V_IDX = V_S + 15
    def atomic():
        a.e(f"v_mov_b32 v{V_IDX}, 1")
        a.e(f"v_mov_b32 v{V_IDX-1}, 0")
        a.e("s_mov_b64 exec, 1")
        a.vmem(f"buffer_atomic_add v{V_IDX}, v{V_IDX-1}, {sr(R_WS,4)}, s{S_CNT} offen sc0 sc1", "atom")
        a.e("s_mov_b64 exec, -1")

    def k_phase(NS, dyn):
        a.c("K phase")
        for g in range(NS):
            a.wait_vm(("K", g))
            for j in range(3):
                for i in range(4):
                    a.e(f"v_dot2c_f32_bf16 v{V_S+g}, v{slot(g)+4*j+i}, v{V_Q+4*j+i}")
            if not dyn:
                load_grp("V", g, g)

    def round_scores(regs, T):
        n = len(regs) // 2
        for k in range(n):
            a.e(f"v_cvt_pk_bf16_f32 v{T+k}, v{regs[2*k]}, v{regs[2*k+1]}")
        for k in range(n):
            a.e(f"v_lshlrev_b32 v{regs[2*k]}, 16, v{T+k}")
            a.e(f"v_and_b32 v{regs[2*k+1]}, 0xffff0000, v{T+k}")
        for r in regs:
            a.e(f"v_mul_f32 v{r}, 0x{SCALE:08x}, v{r}")
        for k in range(n):
            a.e(f"v_cvt_pk_bf16_f32 v{T+k}, v{regs[2*k]}, v{regs[2*k+1]}")
        for k in range(n):
            a.e(f"v_lshlrev_b32 v{regs[2*k]}, 16, v{T+k}")
            a.e(f"v_and_b32 v{regs[2*k+1]}, 0xffff0000, v{T+k}")

    def finish_l():
        a.e(f"v_mov_b32 v{V_T2}, v{V_L}")
        allred_hi(a, "v_add_f32", V_T2, V_T0)
        a.e(f"v_mul_f32 v{V_T1}, 0x{LOG2E:08x}, v{V_MC}")
        a.e("s_mov_b64 exec, 1")
        a.e(f"ds_write_b32 v{AD_LW}, v{V_T2} offset:{L_PART+768}")
        a.e(f"ds_write_b32 v{AD_MW}, v{V_T1} offset:{L_M}")
        a.e("s_mov_b64 exec, -1")

    def tail_prep():
        c16, g16 = V_T0, V_T1
        a.e(f"v_and_b32 v{c16}, 15, v{V_LANE}")
        a.e(f"v_lshrrev_b32 v{g16}, 4, v{V_LANE}")
        a.e(f"v_mul_u32_u24 v{AD_FIN}, 192, v{g16}")
        a.e(f"v_lshl_add_u32 v{AD_FIN}, v{c16}, 4, v{AD_FIN}")
        a.e(f"v_mov_b32 v{V_T2}, 768")
        a.e(f"v_cmp_gt_u32 vcc, 12, v{c16}")
        a.e(f"v_lshlrev_b32 v{AD_L16}, 4, v{V_LANE}")
        a.e(f"v_lshlrev_b32 v{AD_H1}, 10, v{g16}")
        a.e(f"v_cndmask_b32 v{AD_FIN}, v{V_T2}, v{AD_FIN}, vcc")
        a.e(f"v_lshl_add_u32 v{AD_H1}, v{c16}, 4, v{AD_H1}")
        a.e(f"v_lshlrev_b32 v{AD_OBW}, 3, v{c16}")
        a.e(f"v_lshl_add_u32 v{AD_OBW}, v{g16}, 1, v{AD_OBW}")
        a.e(f"s_lshl_b32 s{S_T}, s{S_W}, 7")
        a.e(f"v_add_u32 v{AD_OBW}, s{S_T}, v{AD_OBW}")
        a.e(f"v_and_b32 v{V_T2}, 1, v{V_LANE}")
        a.e(f"v_lshlrev_b32 v{AD_B}, 7, v{V_T2}")
        a.e(f"v_lshl_add_u32 v{AD_B}, v{g16}, 3, v{AD_B}")
        a.e(f"v_mul_u32_u24 v{AD_ST}, {40*8192}, v{V_T2}")
        a.e(f"v_lshl_add_u32 v{AD_ST}, v{g16}, 4, v{AD_ST}")
        a.e(f"v_lshlrev_b32 v{AD_TR}, 2, v{g16}")
        a.e(f"v_bfe_u32 v{V_T2}, v{V_LANE}, 2, 2")
        a.e(f"v_add_u32 v{AD_TR}, v{AD_TR}, v{V_T2}")
        a.e(f"v_mul_u32_u24 v{AD_TR}, 640, v{AD_TR}")
        a.e(f"v_and_b32 v{V_T2}, 3, v{V_LANE}")
        a.e(f"v_lshl_add_u32 v{AD_TR}, v{V_T2}, 3, v{AD_TR}")
        a.e(f"s_sub_u32 s{S_T}, s{S_W}, 2")
        a.e(f"s_lshl_b32 s{S_T}, s{S_T}, 5")
        a.e(f"v_add_u32 v{AD_TR}, s{S_T}, v{AD_TR}")
        a.e(f"v_mov_b32 v{AD_ZERO}, 0")
        a.e(f"s_lshl_b32 s{S_T}, s{S_W}, 10")
        a.e(f"v_mov_b32 v{AD_LW}, s{S_T}")
        a.e(f"s_lshl_b32 s{S_T}, s{S_W}, 2")
        a.e(f"v_mov_b32 v{AD_MW}, s{S_T}")
        a.e(f"s_sub_u32 s{S_T}, s{S_W}, 2")
        a.e(f"s_lshl_b32 s{SX_DMA}, s{S_T}, 10")
        a.e(f"s_lshl_b32 s{S_T}, s{S_T}, 6")
        for k in range(5):
            t = AD_DMA + k
            a.e(f"v_add_u32 v{t}, s{S_T}, v{V_LANE}")
            if k: a.e(f"v_add_u32 v{t}, {384*k}, v{t}")
            a.e(f"v_mul_u32_u24 v{V_T2}, 52429, v{t}")
            a.e(f"v_lshrrev_b32 v{V_T2}, 21, v{V_T2}")
            a.e(f"v_mul_u32_u24 v{V_T2}, 640, v{V_T2}")
            a.e(f"v_lshl_add_u32 v{t}, v{t}, 4, v{V_T2}")
        a.e(f"v_and_b32 v{V_T2}, 3, v{V_LANE}")
        a.e(f"v_lshlrev_b32 v{AD_FW}, 4, v{V_T2}")
        a.e(f"v_lshl_add_u32 v{AD_FW}, v{g16}, 2, v{AD_FW}")
        a.e(f"s_lshl_b32 s{S_T}, s{S_W}, 6")
        a.e(f"v_add_u32 v{AD_FW}, s{S_T}, v{AD_FW}")
        a.e(f"s_lshl_b32 s{SX_REC}, s{S_REC}, 10")
        a.e(f"s_add_u32 s{SX_REC}, s{SX_REC}, {WS_H1}")
        a.e(f"s_lshl_b32 s{SX_H1}, s{S_H}, 3")
        a.e(f"s_lshl_b32 s{S_T}, s{S_W}, 2")
        a.e(f"s_add_u32 s{SX_H1}, s{SX_H1}, s{S_T}")
        a.e(f"s_lshl_b32 s{SX_H1}, s{SX_H1}, 10")
        a.e(f"s_lshl_b32 s{S_T}, s{S_RQ}, 8")
        a.e(f"s_add_u32 s{SX_H1}, s{SX_H1}, s{S_T}")
        a.e(f"s_add_u32 s{SX_H1}, s{SX_H1}, {WS_H1}")
        a.e(f"s_mul_i32 s{SX_ST}, s{S_CH}, 20")
        a.e(f"s_add_u32 s{SX_ST}, s{SX_ST}, s{S_W}")
        a.e(f"s_sub_u32 s{SX_ST}, s{SX_ST}, 2")
        a.e(f"s_lshl_b32 s{SX_ST}, s{SX_ST}, 13")
        a.e(f"s_lshl_b32 s{S_T}, s{S_H}, 2")
        a.e(f"s_add_u32 s{S_T}, s{S_T}, s{S_RQ}")
        a.e(f"s_lshl_b32 s{S_T}, s{S_T}, 6")
        a.e(f"s_add_u32 s{SX_ST}, s{SX_ST}, s{S_T}")
        a.e(f"s_add_u32 s{SX_ST}, s{SX_ST}, {WS_H2}")
        a.e(f"s_add_u32 s{SX_ST+1}, s{SX_ST}, 49152")
        a.e(f"s_add_u32 s{SX_ST+2}, s{SX_ST}, 98304")
        a.e(f"s_add_u32 s{SX_ST3}, s{SX_ST}, 147456")
        a.e(f"s_lshl_b32 s{SX_H2}, s{S_REC}, 13")
        a.e(f"s_lshl_b32 s{S_T}, s{S_W}, 10")
        a.e(f"s_add_u32 s{SX_H2}, s{SX_H2}, s{S_T}")
        a.e(f"s_add_u32 s{SX_H2}, s{SX_H2}, {WS_H2}")
        a.e(f"s_cmp_ge_u32 s{S_REC}, 40")
        a.e(f"s_cselect_b32 s{S_T}, 40, 0")
        a.e(f"s_cselect_b32 s{S_T+1}, 1280, 0")
        a.e(f"s_sub_u32 s{SX_OUT}, s{S_REC}, s{S_T}")
        a.e(f"s_lshl_b32 s{SX_OUT}, s{SX_OUT}, 5")
        a.e(f"s_add_u32 s{SX_OUT}, s{SX_OUT}, s{S_T+1}")

    dmac = [0]
    def wo_dma():
        dmac[0] += 1
        u = dmac[0]
        a.e(f"s_cmp_lt_u32 s{S_W}, 2")
        a.e(f"s_cbranch_scc1 L_nodma{u}")
        for k in range(5):
            a.e(f"s_add_u32 m0, s{SX_DMA}, {L_WO + 6144*k}")
            a.e("s_nop 0")
            a.e(f"buffer_load_dwordx4 v{AD_DMA+k}, {sr(R_WO,4)}, 0 offen{opt.wfl} lds")
        a.label(f"L_nodma{u}")

    def softmax(NS):
        a.c("softmax")
        a.nop(3)
        for ctl in ["quad_perm:[1,0,3,2]", "quad_perm:[2,3,0,1]", "row_half_mirror"]:
            for g in range(NS):
                a.e(f"v_add_f32_dpp v{V_S+g}, v{V_S+g}, v{V_S+g} {ctl} row_mask:0xf bank_mask:0xf")
        round_scores([V_S+g for g in range(NS)], V_ACC)
        M = V_MC
        a.e(f"v_max3_f32 v{M}, v{V_S}, v{V_S+1}, v{V_S+2}")
        k = 3
        while k + 1 < NS:
            a.e(f"v_max3_f32 v{M}, v{M}, v{V_S+k}, v{V_S+k+1}")
            k += 2
        if k < NS:
            a.e(f"v_max_f32 v{M}, v{M}, v{V_S+k}")
        allred_hi(a, "v_max_f32", M, V_T0)
        for g in range(NS):
            a.e(f"v_sub_f32 v{V_S+g}, v{V_S+g}, v{M}")
        for g in range(NS):
            a.e(f"v_mul_f32 v{V_S+g}, 0x{LOG2E:08x}, v{V_S+g}")
        for g in range(NS):
            a.e(f"v_exp_f32 v{V_S+g}, v{V_S+g}")
        a.e("s_nop 0")
        a.e(f"v_add_f32 v{V_L}, v{V_S}, v{V_S+1}")
        for g in range(2, NS):
            a.e(f"v_add_f32 v{V_L}, v{V_L}, v{V_S+g}")
        for k in range(NS//2):
            a.e(f"v_cvt_pk_bf16_f32 v{V_S+k}, v{V_S+2*k}, v{V_S+2*k+1}")
        for r in range(24):
            a.e(f"v_mov_b32 v{V_ACC+r}, 0")

    def v_phase(g0, g1, base=0):
        for g in range(g0, g1):
            a.wait_vm(("V", g))
            forms(a, V_S + g//2, g % 2, V_T0, V_T1)
            pv(a, slot(base + g), V_ACC, V_T0, V_T1)

    S_SOF = S_T + 2
    def issue_task(buf, big):
        if opt.ts: a.e("s_add_u32 s77, s77, 1")
        if big:
            a.e(f"s_mul_i32 s{S_SOF}, s{S_T}, 6144")
            a.e(f"s_add_u32 s{S_SOF}, s{S_SOF}, {POOL_ROW0*384}")
            a.e(f"s_add_u32 s{S_SOF+1}, s{S_SOF}, 3072")
        else:
            a.e(f"s_mul_i32 s{S_SOF}, s{S_T}, 3072")
            a.e(f"s_add_u32 s{S_SOF}, s{S_SOF}, {(POOL_ROW0 + 16*NT1 - 8*NT1)*384}")
        for (R, off) in [(R_K, 0), (R_V, 2)]:
            for gg in range(2 if big else 1):
                for j in range(3):
                    a.e(f"buffer_load_dwordx4 {vr(slot(buf+off+gg)+4*j,4)}, v{V_OFFD}, {sr(R,4)}, s{S_SOF+gg} offen offset:{128*j}{nt if R == R_K else opt.vfl}")
        atomic()

    def read_idx(n_younger):
        a.e(f"s_waitcnt vmcnt({n_younger})")
        a.e(f"v_readfirstlane_b32 s{S_T}, v{V_IDX}")
        a.nop(4)

    def proc_k(buf, big, uid):
        s0, s1 = V_S, V_S + 1
        t = V_S + 2
        a.e(f"v_mov_b32 v{s0}, 0")
        a.e(f"v_mov_b32 v{s1}, 0")
        a.e(f"s_waitcnt vmcnt({7 if big else 4})")
        if big:
            for i in range(12):
                a.e(f"v_dot2c_f32_bf16 v{s0}, v{slot(buf)+i}, v{V_Q+i}")
                a.e(f"v_dot2c_f32_bf16 v{s1}, v{slot(buf+1)+i}, v{V_Q+i}")
            a.nop(3)
            for ctl in ["quad_perm:[1,0,3,2]", "quad_perm:[2,3,0,1]", "row_half_mirror"]:
                a.e(f"v_add_f32_dpp v{s0}, v{s0}, v{s0} {ctl} row_mask:0xf bank_mask:0xf")
                a.e(f"v_add_f32_dpp v{s1}, v{s1}, v{s1} {ctl} row_mask:0xf bank_mask:0xf")
                a.nop(1)
            round_scores([s0, s1], t)
            mn = t + 1
            a.e(f"v_max_f32 v{mn}, v{s0}, v{s1}")
        else:
            for i in range(6):
                a.e(f"v_dot2c_f32_bf16 v{s0}, v{slot(buf)+i}, v{V_Q+i}")
                a.e(f"v_dot2c_f32_bf16 v{s1}, v{slot(buf)+6+i}, v{V_Q+6+i}")
            a.nop(3)
            a.e(f"v_add_f32 v{s0}, v{s0}, v{s1}")
            for ctl in ["quad_perm:[1,0,3,2]", "quad_perm:[2,3,0,1]", "row_half_mirror"]:
                a.nop(2)
                a.e(f"v_add_f32_dpp v{s0}, v{s0}, v{s0} {ctl} row_mask:0xf bank_mask:0xf")
            a.e(f"v_cvt_pk_bf16_f32 v{t}, v{s0}, v{s0}")
            a.e(f"v_and_b32 v{s0}, 0xffff0000, v{t}")
            a.e(f"v_mul_f32 v{s0}, 0x{SCALE:08x}, v{s0}")
            a.e(f"v_cvt_pk_bf16_f32 v{t}, v{s0}, v{s0}")
            a.e(f"v_and_b32 v{s0}, 0xffff0000, v{t}")
            mn = t + 1
            a.e(f"v_mov_b32 v{mn}, v{s0}")
        allred_hi(a, "v_max_f32", mn, t + 2)
        a.e(f"v_cmp_gt_f32 vcc, v{mn}, v{V_MC}")
        a.nop(5)
        a.e("s_cmp_eq_u64 vcc, 0")
        a.e(f"s_cbranch_scc1 L_nors{uid}")
        a.e(f"v_sub_f32 v{t+2}, v{V_MC}, v{mn}")
        a.e(f"v_mul_f32 v{t+2}, 0x{LOG2E:08x}, v{t+2}")
        a.e(f"v_exp_f32 v{t+2}, v{t+2}")
        a.e(f"v_mov_b32 v{V_MC}, v{mn}")
        a.e(f"v_mul_f32 v{V_L}, v{t+2}, v{V_L}")
        for r in range(24):
            a.e(f"v_mul_f32 v{V_ACC+r}, v{t+2}, v{V_ACC+r}")
        a.label(f"L_nors{uid}")
        regs = [s0, s1] if big else [s0]
        for r in regs: a.e(f"v_sub_f32 v{r}, v{r}, v{V_MC}")
        for r in regs: a.e(f"v_mul_f32 v{r}, 0x{LOG2E:08x}, v{r}")
        for r in regs: a.e(f"v_exp_f32 v{r}, v{r}")
        a.e("s_nop 0")
        for r in regs: a.e(f"v_add_f32 v{V_L}, v{V_L}, v{r}")
        if big:
            a.e(f"v_cvt_pk_bf16_f32 v{t}, v{s0}, v{s1}")
            forms(a, t, 0, t+1, t+2)
            forms(a, t, 1, t+3, t+4)
        else:
            a.e(f"v_cvt_pk_bf16_f32 v{t}, v{s0}, v{s0}")
            forms(a, t, 0, t+1, t+2)

    def proc_v(buf, big):
        t = V_S + 2
        pv(a, slot(buf+2), V_ACC, t+1, t+2)
        if big: pv(a, slot(buf+3), V_ACC, t+3, t+4)

    def body(buf, other, big, name, oname):
        a.label(f"L_body{name}")
        proc_k(buf, big, name)
        finish_l()
        read_idx(0)
        a.e(f"s_cmp_lt_u32 s{S_T}, {NT1}")
        a.e(f"s_cbranch_scc1 L_nb{name}")
        a.e(f"s_cmp_lt_u32 s{S_T}, {NT1+NT2}")
        a.e(f"s_cbranch_scc1 L_ns{name}")
        if opt.ts == 1: stamp(a, opt, 2)
        wo_dma()
        proc_v(buf, big)
        a.e("s_branch L_vdone")
        a.label(f"L_nb{name}")
        issue_task(other, True)
        proc_v(buf, big)
        a.e(f"s_branch L_body{oname}B")
        a.label(f"L_ns{name}")
        issue_task(other, False)
        proc_v(buf, big)
        a.e(f"s_branch L_body{oname}S")

    def start_tasks(sfx):
        a.e(f"s_cmp_lt_u32 s{S_T}, {NT1}")
        a.e(f"s_cbranch_scc1 L_sb{sfx}")
        a.e(f"s_cmp_lt_u32 s{S_T}, {NT1+NT2}")
        a.e(f"s_cbranch_scc1 L_ss{sfx}")
        wo_dma()
        finish_l()
        a.e("s_branch L_vdone")
        a.label(f"L_sb{sfx}")
        issue_task(0, True)
        a.e("s_branch L_bodyXB")
        a.label(f"L_ss{sfx}")
        issue_task(0, False)
        a.e("s_branch L_bodyXS")

    a.vm = []
    load_grp("K", 0, 0, thr=False)
    a.e("s_branch L_mainB")
    a.label("L_main")
    a.vm = []
    load_grp("K", 0, 0, thr=False)
    rest_srds()
    srd(R_WS, S_WS, None, WS_SIZE)
    a.e("s_barrier")
    a.e(f"s_cmp_lt_u32 s{S_W}, 4")
    a.e("s_cbranch_scc0 L_mainB")
    if opt.ts: a.e("s_mov_b32 s77, 0")
    pre_q(NSA, "A")
    k_phase(NSA, False)
    softmax(NSA)
    v_phase(0, NSA)
    tail_prep()
    a.e(f"s_lshl_b32 s{S_T}, s{S_W}, 2")
    a.e(f"v_mov_b32 v{V_T2}, s{S_T}")
    a.e(f"s_mov_b32 s{S_SPIN}, 0")
    a.label("L_pwait")
    a.e(f"ds_read_b32 v{V_T1}, v{V_T2} offset:{L_SFLAG}")
    a.e("s_waitcnt lgkmcnt(0)")
    a.e(f"v_cmp_ne_u32 vcc, 1, v{V_T1}")
    a.nop(5)
    a.e("s_cmp_eq_u64 vcc, 0")
    a.e(f"s_cbranch_scc1 L_pok")
    a.e(f"s_add_u32 s{S_SPIN}, s{S_SPIN}, 1")
    a.e(f"s_cmp_gt_u32 s{S_SPIN}, {SPINMAX*16}")
    a.e(f"s_cbranch_scc1 L_pok")
    a.e("s_sleep 8")
    a.e(f"s_branch L_pwait")
    a.label("L_pok")
    a.vm = []
    atomic()
    read_idx(0)
    start_tasks("A")
    a.label("L_mainB")
    a.vm = []
    if opt.ts: a.e("s_mov_b32 s77, 0")
    pre_q(NSB, "B", True)
    k_phase(NSB, True)
    softmax(NSB)
    a.wait_vm("atom")
    a.e(f"v_readfirstlane_b32 s{S_T}, v{V_IDX}")
    a.nop(4)
    vm_save = list(a.vm)
    a.e(f"s_cmp_lt_u32 s{S_T}, {NT1}")
    a.e("s_cbranch_scc0 L_rare")
    issue_task(0, True)
    a.vm = vm_save + ["t"]*13
    v_phase(0, NSB, NSB)
    tail_prep()
    a.e("s_branch L_bodyXB")
    a.label("L_rare")
    a.vm = vm_save
    a.e(f"s_mov_b32 s{S_SOF+2}, s{S_T}")
    v_phase(0, NSB, NSB)
    tail_prep()
    a.e(f"s_mov_b32 s{S_T}, s{S_SOF+2}")
    start_tasks("B")
    body(0, 4, True, "XB", "Y")
    body(4, 0, True, "YB", "X")
    body(0, 4, False, "XS", "Y")
    body(4, 0, False, "YS", "X")
    a.label("L_vdone")
    a.vm = []
    if opt.ts in (1, 8): stamp(a, opt, 3)
    if opt.ts == 4: stamp(a, opt, 1)
    if opt.ts == 9: stamp(a, opt, 3)
    if opt.ts in (5, 6): stamp(a, opt, 1)
    reduce24(a, V_ACC)
    for j in range(3):
        a.e(f"ds_write_b32 v{V_LDSP}, v{V_ACC+8*j} offset:{L_PART+256*j}")
    a.e("s_waitcnt lgkmcnt(0)")
    a.e("s_barrier")
    if opt.ts == 5: stamp(a, opt, 2)
    a.e(f"s_cmp_eq_u32 s{S_W}, 0")
    a.e("s_cbranch_scc0 L_nopub")
    regs = [slot(8) + 4*k for k in range(8)]
    MW = V_S
    a.e(f"ds_read_b128 {vr(MW,4)}, v{AD_ZERO} offset:{L_M}")
    a.e(f"ds_read_b128 {vr(MW+4,4)}, v{AD_ZERO} offset:{L_M+16}")
    for w in range(8):
        a.e(f"ds_read_b128 {vr(regs[w],4)}, v{AD_FIN} offset:{L_PART+1024*w}")
    a.e("s_waitcnt lgkmcnt(8)")
    Mx = V_S + 8
    a.e(f"v_max3_f32 v{Mx}, v{MW}, v{MW+1}, v{MW+2}")
    a.e(f"v_max3_f32 v{Mx+1}, v{MW+3}, v{MW+4}, v{MW+5}")
    a.e(f"v_max3_f32 v{Mx}, v{Mx}, v{MW+6}, v{MW+7}")
    a.e(f"v_max_f32 v{Mx}, v{Mx}, v{Mx+1}")
    a.e(f"v_and_b32 v{Mx}, 0xffffff00, v{Mx}")
    for w in range(8):
        a.e(f"v_sub_f32 v{MW+w}, v{MW+w}, v{Mx}")
    for w in range(8):
        a.e(f"v_exp_f32 v{MW+w}, v{MW+w}")
    Y = V_S + 12
    Y2 = V_ACC
    for w in range(8):
        if w % 2 == 0: a.e(f"s_waitcnt lgkmcnt({6-w})")
        dst = Y if w % 2 == 0 else Y2
        for r in range(4):
            if w < 2:
                a.e(f"v_mul_f32 v{dst+r}, v{MW+w}, v{regs[w]+r}")
            else:
                a.e(f"v_fmac_f32 v{dst+r}, v{MW+w}, v{regs[w]+r}")
    for r in range(4):
        a.e(f"v_add_f32 v{Y+r}, v{Y+r}, v{Y2+r}")
    a.e("s_mov_b32 exec_lo, 0x10001000")
    a.e("s_mov_b32 exec_hi, 0x10001000")
    a.e(f"v_mov_b32 v{Y+1}, v{Mx}")
    a.e("s_mov_b64 exec, -1")
    for r in range(4):
        a.e(f"v_bfi_b32 v{Y+r}, v{V_FF}, v{V_TAG8}, v{Y+r}")
    a.e(f"buffer_store_dwordx4 {vr(Y,4)}, v{AD_L16}, {sr(R_WS,4)}, s{SX_REC} offen sc1")
    if opt.ts == 5: stamp(a, opt, 3)
    a.label("L_nopub")
    if not opt.notail: gen_tail(a, opt)
    if opt.ts:
        a.label("L_ts")
        if opt.ts in (1, 4, 6, 8, 9): stamp(a, opt, 4)
        a.e("s_waitcnt lgkmcnt(0)")
        if opt.ts == 9:
            a.e(f"s_cmp_eq_u32 s{S_W}, 0")
            a.e("s_cbranch_scc0 L_end")
            a.e(f"s_cmp_lt_u32 s{S_REC}, 80")
            a.e("s_cbranch_scc0 L_end")
            a.e(f"s_mov_b32 s{R_X}, s{S_DBG}")
            a.e(f"s_mov_b32 s{R_X+1}, s{S_DBG+1}")
            a.e(f"s_mov_b32 s{R_X+2}, 256")
            a.e(f"s_mov_b32 s{R_X+3}, 0x00020000")
            a.e(f"v_mov_b32 v{V_T0}, 0")
            a.e("s_mov_b64 exec, 1")
            a.e(f"v_mov_b32 v{V_T1}, s{TS_PAIRS[0]}")
            a.e(f"v_not_b32 v{V_T1}, v{V_T1}")
            a.e(f"v_mov_b32 v{V_T2}, s{TS_PAIRS[4]}")
            a.e(f"v_mov_b32 v{V_ACC}, s{TS_PAIRS[3]}")
            a.e(f"v_mov_b32 v{V_ACC+1}, s{TS_PAIRS[2]}")
            a.e(f"buffer_atomic_umax v{V_T1}, v{V_T0}, {sr(R_X,4)}, 0 offen sc1")
            a.e(f"buffer_atomic_umax v{V_T2}, v{V_T0}, {sr(R_X,4)}, 0 offen offset:4 sc1")
            a.e(f"buffer_atomic_umax v{V_ACC}, v{V_T0}, {sr(R_X,4)}, 0 offen offset:8 sc1")
            a.e(f"buffer_atomic_umax v{V_ACC+1}, v{V_T0}, {sr(R_X,4)}, 0 offen offset:12 sc1")
            a.e("s_branch L_end")
        if opt.ts == 8:
            a.e(f"s_mov_b32 s{R_X}, s{S_DBG}")
            a.e(f"s_mov_b32 s{R_X+1}, s{S_DBG+1}")
            a.e(f"s_mov_b32 s{R_X+2}, 256")
            a.e(f"s_mov_b32 s{R_X+3}, 0x00020000")
            a.e(f"v_mov_b32 v{V_T0}, 0")
            a.e("s_mov_b64 exec, 1")
            def amax(sreg, off, inv=False):
                a.e(f"v_mov_b32 v{V_T1}, s{sreg}")
                if inv: a.e(f"v_not_b32 v{V_T1}, v{V_T1}")
                a.e(f"buffer_atomic_umax v{V_T1}, v{V_T0}, {sr(R_X,4)}, 0 offen offset:{off} sc1")
                a.e("s_waitcnt vmcnt(0)")
            amax(TS_PAIRS[0], 0, True)
            amax(TS_PAIRS[0], 4)
            amax(TS_PAIRS[3], 16)
            amax(TS_PAIRS[4], 20)
            amax(TS_PAIRS[3], 28, True)
            a.e(f"s_cmp_eq_u32 s{S_W}, 0")
            a.e("s_cbranch_scc0 L_ts1")
            amax(TS_PAIRS[1], 8)
            amax(TS_PAIRS[2], 12)
            amax(TS_PAIRS[1], 32, True)
            amax(TS_PAIRS[2], 36, True)
            a.e("s_branch L_end")
            a.label("L_ts1")
            amax(TS_PAIRS[1], 24)
            a.e("s_branch L_end")
        for k in range(5):
            a.e(f"v_mov_b32 v{V_ACC+k}, s{TS_PAIRS[k]}")
        a.e(f"s_getreg_b32 s{S_T}, hwreg(HW_REG_XCC_ID)")
        a.e(f"v_mov_b32 v{V_ACC+5}, s{S_T}")
        a.e(f"s_getreg_b32 s{S_T}, hwreg(HW_REG_HW_ID)")
        a.e(f"v_mov_b32 v{V_ACC+6}, s{S_T}")
        a.e(f"v_mov_b32 v{V_ACC+7}, s77")
        a.e(f"s_lshl_b32 s{S_T}, s2, 3")
        a.e(f"s_add_u32 s{S_T}, s{S_T}, s{S_W}")
        a.e(f"s_lshl_b32 s{S_T}, s{S_T}, 6")
        a.e(f"s_add_u32 s{S_T}, s{S_T}, {WS_TS}")
        a.e(f"v_mov_b32 v{V_T0}, 0")
        a.e("s_mov_b64 exec, 1")
        a.e(f"buffer_store_dwordx4 {vr(V_ACC,4)}, v{V_T0}, {sr(R_WS,4)}, s{S_T} offen")
        a.e(f"buffer_store_dwordx4 {vr(V_ACC+4,4)}, v{V_T0}, {sr(R_WS,4)}, s{S_T} offen offset:16")
    return a

def group4(a, m, t):
    tp = "vcc" if t == "vcc" else f"s[{t}:{t+1}]"
    tl = "vcc_lo" if t == "vcc" else f"s{t}"
    a.e(f"s_lshr_b64 {tp}, s[{m}:{m+1}], 1")
    a.e(f"s_or_b64 s[{m}:{m+1}], s[{m}:{m+1}], {tp}")
    a.e(f"s_lshr_b64 {tp}, s[{m}:{m+1}], 2")
    a.e(f"s_or_b64 s[{m}:{m+1}], s[{m}:{m+1}], {tp}")
    a.e(f"s_and_b32 s{m}, s{m}, 0x11111111")
    a.e(f"s_and_b32 s{m+1}, s{m+1}, 0x11111111")
    a.e(f"s_mul_i32 s{m}, s{m}, 15")
    a.e(f"s_mul_i32 s{m+1}, s{m+1}, 15")
    a.e(f"s_or_b32 {tl}, s{m}, s{m+1}")

def tagmask(a, P, dst):
    a.e(f"v_cmp_ne_u32_sdwa s[{dst}:{dst+1}], v{P}, v{V_TAG8} src0_sel:BYTE_0 src1_sel:BYTE_0")
    for r in range(1, 4):
        m = SX_M + 2*(r-1)
        a.e(f"v_cmp_ne_u32_sdwa s[{m}:{m+1}], v{P+r}, v{V_TAG8} src0_sel:BYTE_0 src1_sel:BYTE_0")
    a.nop(4)
    a.e(f"s_or_b64 s[{SX_M}:{SX_M+1}], s[{SX_M}:{SX_M+1}], s[{SX_M+2}:{SX_M+3}]")
    a.e(f"s_or_b64 s[{dst}:{dst+1}], s[{dst}:{dst+1}], s[{SX_M+4}:{SX_M+5}]")
    a.e(f"s_or_b64 s[{dst}:{dst+1}], s[{dst}:{dst+1}], s[{SX_M}:{SX_M+1}]")
    group4(a, dst, SX_M)

def poll(a, opt, name, P, voff, soff, init_lo, init_hi, sleep, fast_thr):
    N = SX_NEED
    ld = f"buffer_load_dwordx4 {vr(P,4)}, v{voff}, {sr(R_WS,4)}, s{soff} offen sc1"
    a.e(f"s_mov_b32 s{N}, {init_lo}")
    a.e(f"s_mov_b32 s{N+1}, {init_hi}")
    a.e(f"s_mov_b32 s{S_SPIN}, 0")
    a.label(f"L_{name}poll")
    a.e(f"s_mov_b64 exec, s[{N}:{N+1}]")
    a.e(ld)
    a.e("s_waitcnt vmcnt(0)")
    tagmask(a, P, N)
    a.e(f"s_cbranch_scc0 L_{name}ok")
    if fast_thr:
        a.e(f"s_bcnt1_i32_b64 s{SX_M}, s[{N}:{N+1}]")
        a.e(f"s_cmp_le_u32 s{SX_M}, {fast_thr}")
        a.e(f"s_cbranch_scc1 L_{name}fast")
    a.e(f"s_add_u32 s{S_SPIN}, s{S_SPIN}, 1")
    a.e(f"s_cmp_gt_u32 s{S_SPIN}, {SPINMAX}")
    a.e(f"s_cbranch_scc1 L_{name}ok")
    if sleep: a.e(f"s_sleep {sleep}")
    a.e(f"s_branch L_{name}poll")
    if fast_thr:
        a.label(f"L_{name}fast")
        a.e(f"s_mov_b64 exec, s[{N}:{N+1}]")
        a.e(ld)
        a.e(f"s_sleep {opt.fsleep}")
        a.e(ld)
        a.e(f"s_sleep {opt.fsleep}")
        a.label(f"L_{name}fl")
        a.e(ld)
        a.e("s_waitcnt vmcnt(2)")
        tagmask(a, P, N)
        a.e(f"s_cbranch_scc0 L_{name}ok")
        a.e(f"s_mov_b64 exec, s[{N}:{N+1}]")
        a.e(f"s_add_u32 s{S_SPIN}, s{S_SPIN}, 1")
        a.e(f"s_cmp_gt_u32 s{S_SPIN}, {SPINMAX*4}")
        a.e(f"s_cbranch_scc0 L_{name}fl")
    a.label(f"L_{name}ok")
    a.e("s_mov_b64 exec, -1")

def gen_tail(a, opt):
    WOA = [[slot(0) + 6*k + 2*t for t in range(3)] for k in range(4)]
    O = slot(2)
    X = V_ACC
    a.c("waves 2..7: wait for the WG's wo DMA, prefetch wo^T A-fragments (tile nt = w-2 + 6k)")
    a.e(f"s_cmp_lt_u32 s{S_W}, 2")
    a.e("s_cbranch_scc1 L_pollers")
    a.e(f"v_mov_b32 v{V_T0}, 1")
    a.e("s_waitcnt vmcnt(0)")
    a.e("s_mov_b64 exec, 1")
    a.e(f"ds_add_u32 v{AD_ZERO}, v{V_T0} offset:{L_DCNT}")
    a.e("s_mov_b64 exec, -1")
    a.e(f"s_mov_b32 s{S_SPIN}, 0")
    a.label("L_dwait")
    a.e(f"ds_read_b32 v{V_T1}, v{AD_ZERO} offset:{L_DCNT}")
    a.e("s_waitcnt lgkmcnt(0)")
    a.e(f"v_cmp_ne_u32 vcc, 6, v{V_T1}")
    a.nop(5)
    a.e("s_cmp_eq_u64 vcc, 0")
    a.e("s_cbranch_scc1 L_dok")
    a.e(f"s_add_u32 s{S_SPIN}, s{S_SPIN}, 1")
    a.e(f"s_cmp_gt_u32 s{S_SPIN}, {SPINMAX*16}")
    a.e("s_cbranch_scc1 L_dok")
    a.e("s_sleep 1")
    a.e("s_branch L_dwait")
    a.label("L_dok")
    for t in range(3):
        for k in range(4):
            a.e(f"ds_read_b64_tr_b16 {vr(WOA[k][t],2)}, v{AD_TR} offset:{L_WO+10240*t+192*k}")
    a.e("s_branch L_h1done")
    a.label("L_pollers")
    a.c("hop 1 gather: waves 0,1 (b = wave): lane l: s = l/16, chunk = l%16")
    poll(a, opt, "h1", O, AD_H1, SX_H1, "-1", "-1", opt.hsleep, opt.f1)
    if opt.ts in (4, 9): stamp(a, opt, 2)
    if opt.ts == 5: stamp(a, opt, 4)
    Ml, Mm = X, X + 1
    a.e(f"v_mov_b32_dpp v{Ml}, v{O} row_newbcast:12 row_mask:0xf bank_mask:0xf")
    a.e(f"v_mov_b32_dpp v{Mm}, v{O+1} row_newbcast:12 row_mask:0xf bank_mask:0xf")
    a.e(f"v_and_b32 v{Mm}, 0xffffff00, v{Mm}")
    Mx = X + 2
    a.e(f"v_mov_b32 v{Mx}, v{Mm}")
    allred_rows(a, "v_max_f32", Mx, X + 3)
    a.e(f"v_sub_f32 v{Mm}, v{Mm}, v{Mx}")
    a.e(f"v_exp_f32 v{Mm}, v{Mm}")
    a.e("s_nop 0")
    a.e(f"v_mul_f32 v{Ml}, v{Mm}, v{Ml}")
    OW = O + 4
    for r in range(4):
        a.e(f"v_mul_f32 v{OW+r}, v{Mm}, v{O+r}")
    a.e(f"v_mov_b32 v{X+3}, v{Ml}")
    a.nop(1)
    a.e(f"v_permlane32_swap_b32 v{OW}, v{OW+2}")
    a.e(f"v_permlane32_swap_b32 v{OW+1}, v{OW+3}")
    a.e(f"v_permlane16_swap_b32 v{Ml}, v{X+3}")
    a.e(f"v_add_f32 v{OW}, v{OW}, v{OW+2}")
    a.e(f"v_add_f32 v{OW+1}, v{OW+1}, v{OW+3}")
    a.e(f"v_add_f32 v{Ml}, v{Ml}, v{X+3}")
    a.e(f"v_mov_b32 v{X+3}, v{Ml}")
    a.nop(1)
    a.e(f"v_permlane16_swap_b32 v{OW}, v{OW+1}")
    a.e(f"v_permlane32_swap_b32 v{Ml}, v{X+3}")
    a.e(f"v_add_f32 v{OW}, v{OW}, v{OW+1}")
    a.e(f"v_add_f32 v{Ml}, v{Ml}, v{X+3}")
    a.e(f"v_rcp_f32 v{Ml}, v{Ml}")
    a.e("s_nop 0")
    a.e(f"v_mul_f32 v{OW}, v{OW}, v{Ml}")
    a.e(f"v_cvt_pk_bf16_f32 v{OW}, v{OW}, v{OW}")
    a.e(f"s_mov_b32 exec_lo, 0x0fff0fff")
    a.e(f"s_mov_b32 exec_hi, 0x0fff0fff")
    a.e(f"ds_write_b16 v{AD_OBW}, v{OW} offset:{L_OBF}")
    a.e("s_mov_b64 exec, -1")
    a.label("L_h1done")
    a.e("s_waitcnt lgkmcnt(0)")
    a.e("s_barrier")
    a.c("out-proj MFMA (waves 2..7)")
    a.e(f"s_cmp_lt_u32 s{S_W}, 2")
    a.e("s_cbranch_scc1 L_nomfma")
    if opt.ts == 5: stamp(a, opt, 3)
    B = [slot(4) + 2*t for t in range(3)]
    for t in range(3):
        a.e(f"ds_read_b64 {vr(B[t],2)}, v{AD_B} offset:{L_OBF+32*t}")
    D = [V_ACC + 4*k for k in range(4)]
    for t in range(3):
        a.e(f"s_waitcnt lgkmcnt({2-t})")
        for k in range(4):
            src = "0" if t == 0 else vr(D[k], 4)
            a.e(f"v_mfma_f32_16x16x16_bf16 {vr(D[k],4)}, {vr(WOA[k][t],2)}, {vr(B[t],2)}, {src}")
    a.e(f"s_mov_b32 exec_lo, 0x00030003")
    a.e(f"s_mov_b32 exec_hi, 0x00030003")
    a.nop(3)
    sts = [SX_ST, SX_ST+1, SX_ST+2, SX_ST3]
    for k in range(4):
        if k == 3:
            a.e(f"s_cmp_lt_u32 s{S_W}, 4")
            a.e("s_cbranch_scc0 L_no3")
        for r in range(4):
            a.e(f"v_bfi_b32 v{D[k]+r}, v{V_FF}, v{V_TAG8}, v{D[k]+r}")
        a.e(f"buffer_store_dwordx4 {vr(D[k],4)}, v{AD_ST}, {sr(R_WS,4)}, s{sts[k]} offen sc1")
    a.label("L_no3")
    a.e("s_mov_b64 exec, -1")
    if opt.ts == 5: stamp(a, opt, 4)
    if opt.ts == 6: stamp(a, opt, 2)
    a.label("L_nomfma")
    if opt.ts == 4: stamp(a, opt, 3)
    a.c("hop 2: all 8 waves of WGs rec < 80; wave k sums producers 16k..16k+15")
    a.e(f"s_cmp_lt_u32 s{S_REC}, 80")
    a.e("s_cbranch_scc0 L_fin")
    P = slot(5)
    poll(a, opt, "h2", P, AD_L16, SX_H2, "-1", "-1", opt.h2sleep, opt.f2)
    if opt.ts == 6: stamp(a, opt, 3)
    PW = P + 4
    for r in range(4):
        a.e(f"v_mov_b32 v{PW+r}, v{P+r}")
    reduce4_rows(a, PW)
    a.nop(2)
    a.e(f"v_add_f32_dpp v{PW}, v{PW}, v{PW} row_ror:8 row_mask:0xf bank_mask:0xf")
    a.nop(2)
    a.e(f"v_add_f32_dpp v{PW}, v{PW}, v{PW} row_ror:4 row_mask:0xf bank_mask:0xf")
    a.e(f"s_mov_b32 exec_lo, 0x000f000f")
    a.e(f"s_mov_b32 exec_hi, 0x000f000f")
    a.e(f"ds_write_b32 v{AD_FW}, v{PW} offset:{L_FIN}")
    a.e("s_mov_b64 exec, -1")
    a.e("s_waitcnt lgkmcnt(0)")
    a.e("s_barrier")
    a.e(f"s_cmp_eq_u32 s{S_W}, 0")
    a.e("s_cbranch_scc0 L_fin")
    a.e(f"v_lshlrev_b32 v{V_T0}, 2, v{V_LANE}")
    F = slot(6)
    for k in range(4):
        a.e(f"ds_read2_b32 {vr(F+2*k,2)}, v{V_T0} offset0:{(L_FIN % 1024)//4 + 32*k} offset1:{(L_FIN % 1024)//4 + 32*k + 16}" if False else
            f"ds_read2_b32 {vr(F+2*k,2)}, v{V_T2} offset0:{32*k} offset1:{32*k+16}")
    a.lines.insert(len(a.lines)-4, f"    v_add_u32 v{V_T2}, {L_FIN}, v{V_T0}")
    a.e(f"v_lshlrev_b32 v{V_T1}, 1, v{V_LANE}")
    a.e("s_waitcnt lgkmcnt(0)")
    a.e(f"v_add_f32 v{F}, v{F}, v{F+1}")
    a.e(f"v_add_f32 v{F+2}, v{F+2}, v{F+3}")
    a.e(f"v_add_f32 v{F+4}, v{F+4}, v{F+5}")
    a.e(f"v_add_f32 v{F+6}, v{F+6}, v{F+7}")
    a.e(f"v_add_f32 v{F}, v{F}, v{F+2}")
    a.e(f"v_add_f32 v{F+4}, v{F+4}, v{F+6}")
    a.e(f"v_add_f32 v{F}, v{F}, v{F+4}")
    a.e(f"v_cvt_pk_bf16_f32 v{F}, v{F}, v{F}")
    a.e("s_mov_b64 exec, 0xffff")
    a.e(f"buffer_store_short v{F}, v{V_T1}, {sr(R_OUT,4)}, s{SX_OUT} offen{opt.outfl}")
    a.e(f"s_cmp_eq_u32 s{S_REC}, 0")
    a.e("s_cbranch_scc0 L_fin2")
    a.e(f"v_mov_b32 v{V_T0}, s{S_TAG}")
    a.e("s_mov_b64 exec, 1")
    a.e(f"buffer_store_dword v{V_T0}, v{AD_ZERO}, {sr(R_WS,4)}, {WS_EPOCH} offen sc1")
    a.label("L_fin2")
    a.e("s_mov_b64 exec, -1")
    a.label("L_fin")

def finish(a):
    a.label("L_end")
    a.e("s_endpgm")
    a.lines.append('.section .rodata,"a"')
    a.lines.append(".p2align 6")
    a.lines.append(f".amdhsa_kernel {KNAME}")
    for l in ["next_free_vgpr 256", "next_free_sgpr 102", "accum_offset 256", "group_segment_fixed_size 0",
              "kernarg_size 64", "user_sgpr_count 2", "user_sgpr_kernarg_segment_ptr 1", "system_sgpr_workgroup_id_x 1"]:
        a.lines.append("  .amdhsa_" + l)
    a.lines.append(".end_amdhsa_kernel")
    return "\n".join(a.lines) + "\n"

def parser():
    p = argparse.ArgumentParser()
    p.add_argument("--nt", type=int, default=1)
    p.add_argument("--ts", type=int, default=0)
    p.add_argument("--grid", type=int, default=256)
    p.add_argument("--qdelay", type=int, default=32)
    p.add_argument("--qsleep", type=int, default=8)
    p.add_argument("--hsleep", type=int, default=1)
    p.add_argument("--h2sleep", type=int, default=1)
    p.add_argument("--fine", type=int, default=5)
    p.add_argument("--tgroups", type=int, default=9)
    p.add_argument("--map", type=int, default=3)
    p.add_argument("--ajoin", type=int, default=1)
    p.add_argument("--vfl", default=" nt")
    p.add_argument("--wfl", default=" nt")
    p.add_argument("--f1", type=int, default=0)
    p.add_argument("--f2", type=int, default=0)
    p.add_argument("--fsleep", type=int, default=5)
    p.add_argument("--outfl", default="")
    p.add_argument("--rot", type=int, default=0)
    p.add_argument("--nsa", type=int, default=16)
    p.add_argument("--nsmall", type=int, default=32)
    p.add_argument("--nsb", type=int, default=8)
    p.add_argument("--cstride", type=int, default=16640)
    p.add_argument("--noq", type=int, default=0)
    p.add_argument("--nowo", type=int, default=0)
    p.add_argument("--notail", type=int, default=0)
    p.add_argument("-o", default="k.s")
    return p

if __name__ == "__main__":
    opt = parser().parse_args()
    setcfg(opt.nsa, opt.nsb, opt.nsmall)
    a = gen(opt)
    open(opt.o, "w").write(finish(a))
    print("wrote", opt.o, len(a.lines), "lines")
```
